```python
import torch

def _softmax(x, axis=-1):
    return torch.softmax(x, dim=axis)
def _gelu(x):
    return torch.nn.functional.gelu(x, approximate="tanh")
def _silu(x):
    return torch.nn.functional.silu(x)
def _sigmoid(x):
    return torch.sigmoid(x)
def _layernorm(x, axis=-1, eps=1e-5):
    m = x.mean(dim=axis, keepdim=True)
    v = x.var(dim=axis, keepdim=True, unbiased=False)
    return (x - m) / torch.sqrt(v + eps)
def _scatter_add(tgt, idx, src, axis=0):
    return tgt.clone().index_add_(axis, idx, src)
def _segment_sum(src, seg, n):
    out = torch.zeros((n,) + src.shape[1:], dtype=src.dtype)
    return out.index_add_(0, seg, src)
def _pad(x, pw):
    flat = tuple(v for pair in reversed(pw) for v in pair)
    return torch.nn.functional.pad(x, flat)

kernel_name = 'sequential_preLN__ssm_conv_s4__dense_activation_relu__prompt'

def setup_inputs():

    _w = (lambda a: (lambda t: t.to(torch.bfloat16) if t.is_floating_point() else t)(torch.as_tensor(a)))
    def _A_setup():
        B, L, D, N = 1, 2048, 448, 256
        A_re = -(lambda _x: torch.exp(torch.as_tensor(_x)))((lambda *s: torch.randn(*s, dtype=torch.bfloat16) * 3.2)(D, N))
        A_im = torch.pi * (lambda *s: torch.randn(*s, dtype=torch.bfloat16) * 0.05)(D, N)
        B_re = (lambda *s: torch.randn(*s, dtype=torch.bfloat16) * 0.05)(D, N)
        B_im = (lambda *s: torch.randn(*s, dtype=torch.bfloat16) * 0.05)(D, N)
        C_re = (lambda *s: torch.randn(*s, dtype=torch.bfloat16) * 0.05)(D, N)
        C_im = (lambda *s: torch.randn(*s, dtype=torch.bfloat16) * 0.05)(D, N)
        log_dt = (lambda *s: torch.randn(*s, dtype=torch.bfloat16) * 0.05)(D) * 0.5 - 4.0
        Dskip = (lambda *s: torch.randn(*s, dtype=torch.bfloat16) * 0.05)(D)
        return {
            "u": _w((lambda *s: torch.randn(*s, dtype=torch.bfloat16) * 0.05)(B, L, D)),
            "A_re": _w(A_re),
            "A_im": _w(A_im),
            "B_re": _w(B_re),
            "B_im": _w(B_im),
            "C_re": _w(C_re),
            "C_im": _w(C_im),
            "log_dt": _w(log_dt),
            "Dskip": _w(Dskip),
        }
    _A_in = _A_setup()

    def _B_setup():
        B, S, D, Dff = 1, 2048, 448, 1792
        return {
            "x": _w((lambda *s: torch.randn(*s, dtype=torch.bfloat16) * 0.05)(B, S, D)),
            "w1": _w((lambda *s: torch.randn(*s, dtype=torch.bfloat16) * 0.05)(D, Dff)),
            "w2": _w((lambda *s: torch.randn(*s, dtype=torch.bfloat16) * 0.05)(Dff, D)),
        }
    _B_in = _B_setup()

    return {
        "A_u": _A_in["u"],
        "A_A_re": _A_in["A_re"],
        "A_A_im": _A_in["A_im"],
        "A_B_re": _A_in["B_re"],
        "A_B_im": _A_in["B_im"],
        "A_C_re": _A_in["C_re"],
        "A_C_im": _A_in["C_im"],
        "A_log_dt": _A_in["log_dt"],
        "A_Dskip": _A_in["Dskip"],
        "B_x": _B_in["x"],
        "B_w1": _B_in["w1"],
        "B_w2": _B_in["w2"],
    }

def reference(A_u, A_A_re, A_A_im, A_B_re, A_B_im, A_C_re, A_C_im, A_log_dt, A_Dskip, B_x, B_w1, B_w2):
    def _A_ref(u, A_re, A_im, B_re, B_im, C_re, C_im, log_dt, Dskip):
        Bsz, L, D = u.shape
        dt = torch.exp(log_dt)[:, None]
        A = A_re + 1j * A_im
        Bc = B_re + 1j * B_im
        Cc = C_re + 1j * C_im
        logdA = dt * A
        dB = dt * Bc
        l = (lambda x, dt: x.to(dt))(torch.arange(L), A_re.dtype)
        P = torch.exp(logdA[:, :, None] * l[None, None, :])
        K = torch.einsum("dn,dnl,dn->dl", Cc, P, dB).real
        L2 = 2 * L
        Kp = _pad(K, ((0, 0), (0, L)))
        up = (lambda x, *d: x.permute(*d))(u, 0, 2, 1)
        up = _pad(up, ((0, 0), (0, 0), (0, L)))
        Kf = (lambda x, axes=(-2,-1): torch.fft.rfft2(x.float(), dim=axes))(Kp[:, None, :], axes=(-2, -1))
        Uf = (lambda x, axes=(-2,-1): torch.fft.rfft2(x.float(), dim=axes))(up[:, :, None, :], axes=(-2, -1))
        Yf = Uf * Kf[None, :, :, :]
        y = (lambda x, s, axes=(-2,-1): torch.fft.irfft2(x, s=s, dim=axes).to(torch.bfloat16))(Yf, (1, L2), axes=(-2, -1))[:, :, 0, :L]
        y = (lambda x, *d: x.permute(*d))(y, 0, 2, 1) + u * Dskip[None, None, :]
        return y

    def _B_ref(x, w1, w2):
        h = torch.einsum("bsd,df->bsf", x, w1)
        zero = torch.zeros_like(h)
        h = torch.maximum(h, zero)
        return torch.einsum("bsf,fd->bsd", h, w2)

    x = A_u
    h = x + _A_ref(_layernorm(x, axis=-1), A_A_re, A_A_im, A_B_re, A_B_im, A_C_re, A_C_im, A_log_dt, A_Dskip)
    h2 = h + _B_ref(_layernorm(h, axis=-1), B_w1, B_w2)
    return h2
```

```python
import re

TRANS = ('v_exp_f32', 'v_log_f32', 'v_rcp_f32', 'v_rsq_f32', 'v_sqrt_f32', 'v_sin_f32', 'v_cos_f32')

def _regs(tok):
    tok = tok.strip()
    tok = tok.lstrip('-')
    m = re.match(r'^(?:abs\(|neg\()?\|?([vas])(\d+)\|?\)?$', tok)
    if m:
        return {(m.group(1), int(m.group(2)))}
    m = re.match(r'^([vas])\[(\d+):(\d+)\]$', tok)
    if m:
        return {(m.group(1), i) for i in range(int(m.group(2)), int(m.group(3)) + 1)}
    if tok == 'vcc':
        return {('vcc', 0)}
    if tok == 'exec':
        return {('exec', 0)}
    if tok == 'm0':
        return {('m0', 0)}
    return set()

def _split_ops(s):
    out = []; depth = 0; cur = ''
    for ch in s:
        if ch in '[(':
            depth += 1
        if ch in '])':
            depth -= 1
        if ch == ',' and depth == 0:
            out.append(cur.strip()); cur = ''
        else:
            cur += ch
    if cur.strip():
        out.append(cur.strip())
    return out

class Ins:
    def __init__(self, text):
        self.text = text
        t = text.split(';')[0].strip()
        self.label = None
        self.kind = 'other'
        self.dst = set(); self.src = set()
        self.ws = 1
        self.passes = 0
        self.A = set(); self.B = set(); self.C = set()
        self.dpp = False
        self.wide_store_data = set()
        self.mn = ''
        if t.endswith(':'):
            self.label = t[:-1]; self.kind = 'label'; self.ws = 0
            return
        if not t or t.startswith('.') or text.strip().startswith(';'):
            self.kind = 'dir'; self.ws = 0
            return
        parts = t.split(None, 1)
        mn = parts[0]; self.mn = mn
        rest = parts[1] if len(parts) > 1 else ''
        ops = _split_ops(rest)
        mods = ''
        if ops:
            last = ops[-1].split()
            if len(last) > 1:
                ops[-1] = last[0]; mods = ' '.join(last[1:])
        base = mn.replace('_e32', '').replace('_e64', '').replace('_dpp', '').replace('_sdwa', '')
        R = [_regs(o) for o in ops]
        if mn == 's_nop':
            self.kind = 'nop'; self.ws = int(ops[0], 0) + 1
        elif mn.startswith('v_mfma'):
            self.kind = 'mfma'
            self.dst = R[0]; self.A = R[1]; self.B = R[2]; self.C = R[3]
            self.src = R[1] | R[2] | R[3]
            if '_f32_16x16x4_f32' in mn: self.passes = 8; self.sg = True
            elif '_f32_32x32x2_f32' in mn: self.passes = 16; self.sg = True
            elif '16x16x32' in mn: self.passes = 4; self.sg = False
            elif '32x32x16' in mn: self.passes = 8; self.sg = False
            else: raise ValueError(mn)
        elif mn.startswith('v_'):
            self.kind = 'trans' if base in TRANS else 'valu'
            if any(k in mods for k in ('row_', 'quad_perm', 'wave_', 'bank_mask', 'row_mask')) or '_dpp' in mn:
                self.dpp = True
            if base.startswith('v_permlane') and 'swap' in base:
                self.dst = R[0] | R[1]; self.src = R[0] | R[1]
            elif base.startswith('v_add_co') or base.startswith('v_sub_co') or base.startswith('v_addc_co') or base.startswith('v_subb_co'):
                self.dst = R[0] | R[1]
                for r in R[2:]: self.src |= r
            else:
                self.dst = R[0]
                for r in R[1:]: self.src |= r
                if base.startswith('v_fmac') or base.startswith('v_pk_fmac') or base.startswith('v_dot2c') or self.dpp:
                    self.src |= R[0]
                if base.startswith('v_cndmask') and len(R) == 3:
                    self.src |= {('vcc', 0)}
        elif mn.startswith('buffer_') or mn.startswith('global_') or mn.startswith('flat_'):
            self.kind = 'vmem'
            is_store = 'store' in mn or ('atomic' in mn and 'sc0' not in mods)
            lds = ' lds' in (' ' + mods) or '_lds_' in mn
            if is_store or lds:
                for r in R: self.src |= r
                if is_store and ('x4' in mn or 'x3' in mn):
                    self.wide_store_data = R[0] if mn.startswith('buffer_') else R[1]
                if lds: self.src |= {('m0', 0)}
            else:
                self.dst = R[0]
                for r in R[1:]: self.src |= r
        elif mn.startswith('ds_'):
            self.kind = 'ds'
            if 'write' in mn or mn.startswith('ds_add') :
                for r in R: self.src |= r
            else:
                self.dst = R[0]
                for r in R[1:]: self.src |= r
        elif mn.startswith('s_'):
            self.kind = 'salu'
            if mn.startswith('s_cbranch') or mn == 's_branch':
                self.kind = 'branch'; self.target = ops[0]
            elif mn in ('s_waitcnt', 's_barrier', 's_endpgm', 's_setprio', 's_sleep'):
                pass
            elif mn.startswith('s_cmp'):
                for r in R: self.src |= r
            else:
                if R: self.dst = R[0]
                for r in R[1:]: self.src |= r
        else:
            raise ValueError('unknown instr ' + text)

def need(p, c):
    n = 0
    pv = {r for r in p.dst if r[0] in 'va'}
    ps = {r for r in p.dst if r[0] in ('s', 'vcc')}
    if p.kind in ('valu', 'trans'):
        if c.kind == 'mfma' and pv & c.src: n = max(n, 2)
        if c.kind in ('valu', 'trans'):
            if c.dpp and pv & c.src: n = max(n, 2)
            if c.mn.startswith('v_readfirstlane') or c.mn.startswith('v_readlane'):
                if pv & c.src: n = max(n, 1)
                if ps & c.src: n = max(n, 4)
            if c.mn.startswith('v_permlane') and pv & c.src: n = max(n, 2)
            if ps & c.src: n = max(n, 2)
            if p.kind == 'trans' and c.kind == 'valu' and pv & c.src: n = max(n, 1)
            if ('op_sel' in p.text or 'sdwa' in p.text) and pv & (c.src | c.dst): n = max(n, 1)
        if c.kind == 'mfma' and p.kind == 'trans' and pv & c.src: n = max(n, 2)
        if c.kind == 'vmem' and ps & c.src: n = max(n, 5)
        if c.kind in ('salu', 'branch') and ps & c.src: n = max(n, 1)
    if p.kind == 'mfma':
        P = p.passes
        tab_ab = {2: 5, 4: 8, 8: 12, 16: 20} if not p.sg else {2: 4, 4: 6, 8: 10, 16: 18}
        tab_c_ov = {2: 4, 4: 6, 8: 10, 16: 18} if not p.sg else {2: 2, 4: 4, 8: 8, 16: 16}
        if c.kind == 'mfma':
            if p.dst & (c.A | c.B): n = max(n, tab_ab[P])
            if p.dst & c.C:
                if p.dst == c.C and p.mn == c.mn: n = max(n, 0 if P >= 4 else 2)
                else: n = max(n, tab_c_ov[P])
            elif p.dst & c.dst:
                n = max(n, tab_ab[P])
        elif c.kind in ('valu', 'trans'):
            if p.dst & (c.src | c.dst): n = max(n, tab_ab[P])
            if not p.sg and p.C & c.dst: n = max(n, {2: 1, 4: 3, 8: 7, 16: 15}[P])
        elif c.kind in ('vmem', 'ds'):
            if p.dst & (c.src | c.dst): n = max(n, tab_ab[P])
    if p.kind == 'vmem' and p.wide_store_data:
        if c.kind in ('valu', 'trans', 'mfma') and p.wide_store_data & c.dst: n = max(n, 2)
        elif p.wide_store_data & c.dst: n = max(n, 1)
    if p.kind == 'salu' and ('m0', 0) in p.dst and ('m0', 0) in c.src and c.kind in ('vmem', 'ds'):
        n = max(n, 1)
    return n

class Asm:
    def __init__(self):
        self.lines = []
    def __call__(self, text):
        for l in text.split('\n'):
            if l.strip():
                self.lines.append(l.strip())
    def label(self, name):
        self.lines.append(name + ':')
    def finalize(self):
        ins = [Ins(l) for l in self.lines]
        out = []
        def required(hist, c):
            dist = 0; worst = 0
            for p in reversed(hist):
                if p.kind in ('label', 'dir'): continue
                nd = need(p, c) - dist
                if nd > worst: worst = nd
                dist += p.ws
                if dist > 24: break
            return worst
        for c in ins:
            if c.kind not in ('label', 'dir'):
                w = required(out, c)
                while w > 0:
                    k = min(w, 16)
                    out.append(Ins(f's_nop {k-1}'))
                    w -= k
            out.append(c)
        changed = True
        while changed:
            changed = False
            labels = {x.label: i for i, x in enumerate(out) if x.kind == 'label'}
            for i, b in enumerate(out):
                if b.kind != 'branch': continue
                ti = labels.get(b.target)
                if ti is None: continue
                hist = out[max(0, i - 40):i + 1]
                worst = 0; seq = list(hist); dist = 0
                for c in out[ti:ti + 40]:
                    if c.kind in ('label', 'dir'): continue
                    w = required(seq, c)
                    worst = max(worst, w)
                    seq.append(c); dist += c.ws
                    if dist > 24 or c.kind == 'branch' or c.mn == 's_endpgm': break
                if worst > 0:
                    out.insert(i, Ins(f's_nop {min(worst,16)-1}'))
                    changed = True
                    break
        txt = []
        for x in out:
            if x.kind == 'label': txt.append(x.text)
            else: txt.append('    ' + x.text)
        return '\n'.join(txt) + '\n'

def kernel_header(name):
    return f".globl {name}\n.p2align 8\n.type {name},@function\n{name}:\n"

def kernel_desc(name, vgpr, sgpr=102, accum=None):
    if accum is None:
        accum = (vgpr + 3) // 4 * 4
    return f""".p2align 6
.amdhsa_kernel {name}
  .amdhsa_next_free_vgpr {vgpr}
  .amdhsa_next_free_sgpr {sgpr}
  .amdhsa_accum_offset {accum}
  .amdhsa_group_segment_fixed_size 0
  .amdhsa_kernarg_size 120
  .amdhsa_user_sgpr_count 2
  .amdhsa_user_sgpr_kernarg_segment_ptr 1
  .amdhsa_system_sgpr_workgroup_id_x 1
  .amdhsa_float_denorm_mode_32 3
.end_amdhsa_kernel
"""
```

```python
import sys
sys.path.insert(0, 'work')
from asmlib import *

NAME = 'sequential_preLN__ssm_conv_s4__dense_activation_relu__prompt'
WS_UT, WS_XT, WS_RHI, WS_RLO, WS_HT, WS_W1F, WS_W2F, WS_H1F = 0x0, 0x200000, 0x400000, 0x600000, 0x800000, 0xA00000, 0xC00000, 0x1000000

def f32bits(x):
    import struct
    return '0x%08x' % struct.unpack('<I', struct.pack('<f', x))[0]

L2E = '0x3fb8aa3b'; L2E_LO = '0x32a57060'; LN2 = '0x3f317218'; INV2PI = '0x3e22f983'

def add64(a, dst, src, off):
    a(f"s_add_u32 s{dst}, s{src}, {hex(off)}")
    a(f"s_addc_u32 s{dst+1}, s{src+1}, 0")

def interleave(main, side, start=0):
    if not side: return list(main)
    out = []; n = len(main); k = len(side)
    step = max(1, (n - start) // k)
    si = 0
    for i, m in enumerate(main):
        out.append(m)
        if i >= start and (i - start) % step == step - 1 and si < k:
            out.append(side[si]); si += 1
    out += side[si:]
    return out

def gen_k1():
    a = Asm()
    a("s_cmp_ge_u32 s2, 256")
    a("s_cbranch_scc1 K1_END")
    a("s_load_dwordx16 s[16:31], s[0:1], 0")
    a("s_load_dwordx2 s[32:33], s[0:1], 112")
    a("v_lshrrev_b32 v1, 6, v0")
    a("v_readfirstlane_b32 s6, v1")
    a("v_and_b32 v2, 63, v0")
    a("s_cmp_ge_u32 s2, 224")
    a("s_cbranch_scc1 K1_LN")
    a("v_lshlrev_b32 v3, 1, v0")
    a("s_lshl_b32 s3, s2, 10")
    a("v_add_u32 v3, s3, v3")
    a("v_lshrrev_b32 v4, 8, v0")
    a("s_lshl_b32 s4, s2, 1")
    a("v_add_u32 v4, s4, v4")
    a("v_lshlrev_b32 v5, 1, v4")
    a("s_waitcnt lgkmcnt(0)")
    for i, sp in enumerate((18, 20, 22, 24, 26, 28)):
        a(f"global_load_ushort v{8+i}, v3, s[{sp}:{sp+1}]")
    a("global_load_ushort v14, v5, s[30:31]")
    a(f"s_mov_b32 s40, {L2E}")
    a(f"s_mov_b32 s41, {L2E_LO}")
    a(f"s_mov_b32 s42, {LN2}")
    a(f"s_mov_b32 s43, {INV2PI}")
    a("s_mov_b32 s44, 0xffff0000")
    a("s_mov_b32 s45, 0x07060302")
    a("s_waitcnt vmcnt(0)")
    for i in range(7):
        a(f"v_lshlrev_b32 v{8+i}, 16, v{8+i}")
    a("v_mul_f32 v15, s40, v14")
    a("v_fma_f32 v16, v14, s40, -v15")
    a("v_fma_f32 v16, v14, s41, v16")
    a("v_exp_f32 v17, v15")
    a("v_mul_f32 v16, s42, v16")
    a("v_fma_f32 v17, v17, v16, v17")
    a("v_cvt_pk_bf16_f32 v17, v17, v17")
    a("v_lshlrev_b32 v17, 16, v17")
    a("v_mul_f32 v20, v17, v8")
    a("v_mul_f32 v21, v17, v9")
    a("v_mul_f32 v20, s40, v20")
    a("v_mul_f32 v21, s43, v21")
    a("v_mul_f32 v18, v17, v10")
    a("v_mul_f32 v19, v17, v11")
    a("v_mul_f32 v22, v12, v18")
    a("v_fma_f32 v22, -v13, v19, v22")
    a("v_mul_f32 v23, v12, v19")
    a("v_fma_f32 v23, v13, v18, v23")
    a("v_lshlrev_b32 v24, 4, v0")
    a("ds_write_b128 v24, v[20:23]")
    a("v_and_b32 v3, 15, v2")
    a("v_lshrrev_b32 v4, 4, v2")
    a("v_lshlrev_b32 v5, 3, v3")
    a("v_cvt_f32_u32 v5, v5")
    def bases(row, o0, o1, o2, t0, t1):
        a(f"v_and_b32 {t0}, 7, {row}")
        a(f"v_lshrrev_b32 {t1}, 3, {row}")
        a(f"v_lshl_add_u32 {o0}, {t1}, 7, {t0}")
        a(f"v_and_b32 {t0}, 3, {row}")
        a(f"v_lshlrev_b32 {t0}, 1, {t0}")
        a(f"v_bfe_u32 {t1}, {row}, 2, 1")
        a(f"v_lshl_add_u32 {t0}, {t1}, 7, {t0}")
        a(f"v_add_u32 {t0}, 0x100, {t0}")
        a(f"v_and_b32 {t1}, 1, {row}")
        a(f"v_lshlrev_b32 {t1}, 2, {t1}")
        a(f"v_bfe_u32 {o2}, {row}, 1, 2")
        a(f"v_lshl_add_u32 {t1}, {o2}, 7, {t1}")
        a(f"v_add_u32 {t1}, 0x200, {t1}")
        a(f"v_cmp_gt_u32 vcc, 8, {row}")
        a(f"v_cndmask_b32 {o1}, {t1}, {t0}, vcc")
        a(f"v_lshlrev_b32 {o2}, 7, {row}")
        a(f"v_add_u32 {o2}, 0x400, {o2}")
    bases('v3', 'v6', 'v7', 'v8', 'v9', 'v10')
    a("v_cvt_f32_u32 v6, v6")
    a("v_cvt_f32_u32 v7, v7")
    a("v_cvt_f32_u32 v8, v8")
    a("s_lshl_b32 s7, s6, 10")
    a("v_lshlrev_b32 v9, 6, v4")
    a("v_add_u32 v9, s7, v9")
    for r in range(12):
        a(f"v_mov_b32 v{16+r}, 0")
    a("s_waitcnt lgkmcnt(0)")
    a("s_barrier")
    FX = ['v5', 'v6', 'v7', 'v8']
    def frag(setid, X, hl):
        return 80 + 32 * setid + 8 * X + 4 * hl
    def mfmas(setid):
        out = []
        for b in range(3):
            acc = f"v[{16+4*b}:{19+4*b}]"
            Fh = frag(setid, b + 1, 0); Fl = frag(setid, b + 1, 1); Gh = frag(setid, 0, 0); Gl = frag(setid, 0, 1)
            out.append(f"v_mfma_f32_16x16x32_bf16 {acc}, v[{Fh}:{Fh+3}], v[{Gh}:{Gh+3}], {acc}")
            out.append(f"v_mfma_f32_16x16x32_bf16 {acc}, v[{Fh}:{Fh+3}], v[{Gl}:{Gl+3}], {acc}")
            out.append(f"v_mfma_f32_16x16x32_bf16 {acc}, v[{Fl}:{Fl+3}], v[{Gh}:{Gh+3}], {acc}")
        return out
    for e in range(4):
        a(f"ds_read_b128 v[{28+4*e}:{31+4*e}], v9 offset:{e*16}")
    for s in range(4):
        body = []
        st = s & 1
        for e in range(4):
            P = 28 + 4 * e
            body.append(f"s_waitcnt lgkmcnt({3 if s < 3 else 3-e})")
            zr = [44 + X for X in range(4)]; zi = [48 + X for X in range(4)]
            er = [52 + X for X in range(4)]; sn = [56 + X for X in range(4)]; cs = [60 + X for X in range(4)]
            for X in range(4): body.append(f"v_mul_f32 v{zr[X]}, v{P}, {FX[X]}")
            for X in range(4): body.append(f"v_mul_f32 v{zi[X]}, v{P+1}, {FX[X]}")
            for X in range(4): body.append(f"v_exp_f32 v{er[X]}, v{zr[X]}")
            for X in range(4): body.append(f"v_fract_f32 v{zi[X]}, v{zi[X]}")
            for X in range(4): body.append(f"v_sin_f32 v{sn[X]}, v{zi[X]}")
            for X in range(4): body.append(f"v_cos_f32 v{cs[X]}, v{zi[X]}")
            for X in range(4): body.append(f"v_mul_f32 v{sn[X]}, v{er[X]}, v{sn[X]}")
            for X in range(4): body.append(f"v_mul_f32 v{cs[X]}, v{er[X]}, v{cs[X]}")
            body.append(f"v_mul_f32 v64, v{P+2}, v{cs[0]}")
            body.append(f"v_mul_f32 v65, v{P+2}, v{sn[0]}")
            body.append(f"v_fma_f32 v64, -v{P+3}, v{sn[0]}, v64")
            body.append(f"v_fma_f32 v65, -v{P+3}, v{cs[0]}, -v65")
            if s < 3:
                body.append(f"ds_read_b128 v[{P}:{P+3}], v9 offset:{(s+1)*256+e*16}")
            vals = [(64, 65)] + [(cs[X], sn[X]) for X in range(1, 4)]
            order = [1, 2, 3, 0]
            for X in order:
                r, i = vals[X]
                body.append(f"v_perm_b32 v{frag(st,X,0)+e}, v{i}, v{r}, s45")
                body.append(f"v_and_b32 v{66+2*X}, s44, v{r}")
                body.append(f"v_and_b32 v{67+2*X}, s44, v{i}")
            for X in order:
                r, i = vals[X]
                body.append(f"v_sub_f32 v{66+2*X}, v{r}, v{66+2*X}")
                body.append(f"v_sub_f32 v{67+2*X}, v{i}, v{67+2*X}")
            for X in order:
                body.append(f"v_perm_b32 v{frag(st,X,1)+e}, v{67+2*X}, v{66+2*X}, s45")
        if s > 0:
            body = interleave(body, mfmas((s - 1) & 1), start=4)
        for b in body: a(b)
    for m in mfmas(1): a(m)
    a("s_mul_i32 s7, s6, 3072")
    a("v_lshlrev_b32 v9, 2, v2")
    a("v_add_u32 v9, s7, v9")
    for r in range(12):
        a(f"ds_write_b32 v9, v{16+r} offset:{8192 + r*256}")
    a("s_waitcnt lgkmcnt(0)")
    a("s_barrier")
    a("s_lshr_b32 s8, s6, 2")
    a("s_and_b32 s9, s6, 3")
    a("s_mul_i32 s10, s8, 12288")
    a("s_lshl_b32 s11, s9, 8")
    a("s_add_u32 s10, s10, s11")
    a("v_lshlrev_b32 v9, 2, v2")
    a("v_add_u32 v9, s10, v9")
    for b in range(3):
        for w in range(4):
            a(f"ds_read_b32 v{28+4*b+w}, v9 offset:{8192 + w*3072 + b*1024}")
    a("v_lshlrev_b32 v10, 2, v4")
    a("v_add_u32 v10, s9, v10")
    bases('v10', 'v44', 'v45', 'v46', 'v11', 'v12')
    a("s_lshl_b32 s11, s8, 12")
    a("s_movk_i32 s12, 0x7f")
    a("s_movk_i32 s13, 0x800")
    for b in range(3):
        a(f"v_lshl_add_u32 v{44+b}, v3, 3, v{44+b}")
        a(f"v_cvt_f32_u32 v{48+b}, v{44+b}")
        a(f"v_lshrrev_b32 v{48+b}, 16, v{48+b}")
        a(f"v_subrev_u32 v{48+b}, 0x4280, v{48+b}")
        a(f"v_med3_i32 v{48+b}, v{48+b}, v{44+b}, s12")
        a(f"v_mov_b32 v52, 1000")
        a(f"v_cmp_ge_u32 vcc, s13, v{44+b}")
        a(f"v_cndmask_b32 v{48+b}, v52, v{48+b}, vcc")
        a(f"v_lshlrev_b32 v{48+b}, 2, v{48+b}")
        a(f"v_add_u32 v{48+b}, s11, v{48+b}")
    a("s_waitcnt lgkmcnt(0)")
    for b in range(3):
        a(f"v_add_f32 v{28+4*b}, v{28+4*b}, v{29+4*b}")
        a(f"v_add_f32 v{30+4*b}, v{30+4*b}, v{31+4*b}")
        a(f"v_add_f32 v{28+4*b}, v{28+4*b}, v{30+4*b}")
        a(f"ds_write_b32 v{48+b}, v{28+4*b} offset:32768")
    a("s_waitcnt lgkmcnt(0)")
    a("s_barrier")
    a("v_and_b32 v9, 0xff, v0")
    a("v_lshlrev_b32 v10, 3, v9")
    a("v_sub_u32 v10, 0x7ff, v10")
    for e in range(8):
        a(f"v_subrev_u32 v{44+e}, {e}, v10")
        a(f"v_cvt_f32_u32 v{52+e}, v{44+e}")
        a(f"v_cvt_pk_bf16_f32 v{52+e}, v{52+e}, v{52+e}")
        a(f"v_and_b32 v{52+e}, 0xffff, v{52+e}")
        a(f"v_subrev_u32 v{52+e}, 0x4280, v{52+e}")
        a(f"v_med3_i32 v{52+e}, v{52+e}, v{44+e}, s12")
        a(f"v_lshlrev_b32 v{52+e}, 2, v{52+e}")
        a(f"v_add_u32 v{52+e}, s11, v{52+e}")
        a(f"ds_read_b32 v{28+e}, v{52+e} offset:32768")
    a("s_waitcnt lgkmcnt(0)")
    for k in range(4):
        a(f"v_cvt_pk_bf16_f32 v{60+k}, v{28+2*k}, v{29+2*k}")
        a(f"v_lshlrev_b32 v70, 16, v{60+k}")
        a(f"v_and_b32 v71, s44, v{60+k}")
        a(f"v_sub_f32 v70, v{28+2*k}, v70")
        a(f"v_sub_f32 v71, v{29+2*k}, v71")
        a(f"v_cvt_pk_bf16_f32 v{64+k}, v70, v71")
    a("s_add_u32 s14, s4, s8")
    a("s_lshl_b32 s14, s14, 12")
    a("v_lshlrev_b32 v9, 4, v9")
    a("v_add_u32 v9, s14, v9")
    add64(a, 34, 32, WS_RHI)
    add64(a, 36, 32, WS_RLO)
    a("global_store_dwordx4 v9, v[60:63], s[34:35]")
    a("global_store_dwordx4 v9, v[64:67], s[36:37]")
    a("s_endpgm")
    a.label("K1_LN")
    ST = 928; XOFF = 64 * ST
    a("s_sub_u32 s3, s2, 224")
    a("s_lshl_b32 s3, s3, 6")
    a("v_lshrrev_b32 v3, 3, v0")
    a("v_and_b32 v4, 7, v0")
    a("v_add_u32 v5, s3, v3")
    a("s_movk_i32 s7, 896")
    a("v_mul_lo_u32 v5, v5, s7")
    a("v_lshl_add_u32 v5, v4, 4, v5")
    a(f"s_movk_i32 s7, {ST}")
    a("v_mul_lo_u32 v6, v3, s7")
    a("v_lshl_add_u32 v6, v4, 4, v6")
    a("s_mov_b32 s44, 0xffff0000")
    a("s_waitcnt lgkmcnt(0)")
    for i in range(7):
        a(f"global_load_dwordx4 v[{16+4*i}:{19+4*i}], v5, s[16:17] offset:{128*i}")
    for i in range(7):
        a(f"s_waitcnt vmcnt({6-i})")
        a(f"ds_write_b128 v6, v[{16+4*i}:{19+4*i}] offset:{XOFF + 128*i}")
        for k in range(4):
            a(f"v_lshlrev_b32 v{48+8*i+2*k}, 16, v{16+4*i+k}")
            a(f"v_and_b32 v{49+8*i+2*k}, s44, v{16+4*i+k}")
    a("v_add_f32 v8, v48, v49")
    a("v_add_f32 v9, v50, v51")
    for k in range(2, 28):
        a(f"v_add_f32 v{8+(k&1)}, v{8+(k&1)}, v{48+2*k}")
        a(f"v_add_f32 v{8+(k&1)}, v{8+(k&1)}, v{49+2*k}")
    a("v_add_f32 v8, v8, v9")
    def red8(r):
        a(f"v_add_f32_dpp {r}, {r}, {r} quad_perm:[1,0,3,2] row_mask:0xf bank_mask:0xf")
        a(f"v_add_f32_dpp {r}, {r}, {r} quad_perm:[2,3,0,1] row_mask:0xf bank_mask:0xf")
        a(f"v_add_f32_dpp {r}, {r}, {r} row_half_mirror row_mask:0xf bank_mask:0xf")
    red8('v8')
    a(f"s_mov_b32 s8, {f32bits(1.0/448)}")
    a("v_mul_f32 v8, s8, v8")
    a("v_mov_b32 v10, 0")
    a("v_mov_b32 v11, 0")
    for k in range(56):
        a(f"v_sub_f32 v{12+(k&1)}, v{48+k}, v8")
        a(f"v_fma_f32 v{10+(k&1)}, v{12+(k&1)}, v{12+(k&1)}, v{10+(k&1)}")
    a("v_add_f32 v10, v10, v11")
    red8('v10')
    a("v_mul_f32 v10, s8, v10")
    a("v_cvt_pk_bf16_f32 v11, v8, v10")
    a("v_lshlrev_b32 v8, 16, v11")
    a("v_and_b32 v10, s44, v11")
    a(f"v_add_f32 v10, {f32bits(1e-5)}, v10")
    a("v_cvt_pk_bf16_f32 v10, v10, v10")
    a("v_lshlrev_b32 v10, 16, v10")
    a("v_sqrt_f32 v10, v10")
    a("v_cvt_pk_bf16_f32 v10, v10, v10")
    a("v_lshlrev_b32 v10, 16, v10")
    a("v_rcp_f32 v10, v10")
    for i in range(7):
        for k in range(4):
            x0 = 48 + 8 * i + 2 * k; x1 = x0 + 1
            a(f"v_sub_f32 v{x0}, v{x0}, v8")
            a(f"v_sub_f32 v{x1}, v{x1}, v8")
            a(f"v_cvt_pk_bf16_f32 v12, v{x0}, v{x1}")
            a(f"v_lshlrev_b32 v{x0}, 16, v12")
            a(f"v_and_b32 v{x1}, s44, v12")
            a(f"v_mul_f32 v{x0}, v{x0}, v10")
            a(f"v_mul_f32 v{x1}, v{x1}, v10")
            a(f"v_cvt_pk_bf16_f32 v{16+4*i+k}, v{x0}, v{x1}")
        a(f"ds_write_b128 v6, v[{16+4*i}:{19+4*i}] offset:{128*i}")
    a("s_waitcnt lgkmcnt(0)")
    a("s_barrier")
    a("v_lshrrev_b32 v3, 4, v2")
    a("v_bfe_u32 v4, v2, 2, 2")
    a("v_and_b32 v5, 3, v2")
    a("v_lshl_add_u32 v6, v3, 3, v4")
    a("v_mul_lo_u32 v6, v6, s7")
    a("v_lshl_add_u32 v6, v5, 3, v6")
    a("v_and_b32 v7, 15, v2")
    a("v_lshlrev_b32 v7, 12, v7")
    a("v_lshl_add_u32 v7, v3, 4, v7")
    a("s_lshl_b32 s9, s3, 1")
    a("v_add_u32 v7, s9, v7")
    a("s_mul_i32 s10, s6, 7")
    for k in range(7):
        a(f"s_add_u32 s11, s10, {k}")
        a("s_cmp_ge_u32 s11, 28")
        a("s_cselect_b32 s12, 28, 0")
        a(f"s_cselect_b32 s13, {XOFF}, 0")
        a(f"s_cselect_b32 s14, {hex(WS_XT)}, {hex(WS_UT)}")
        a("s_sub_u32 s11, s11, s12")
        a("s_lshl_b32 s12, s11, 5")
        a("s_add_u32 s12, s12, s13")
        a("v_add_u32 v8, s12, v6")
        b = 16 + 8 * (k & 1)
        for hh in range(2):
            for x in range(2):
                a(f"ds_read_b64_tr_b16 v[{b+4*hh+2*x}:{b+4*hh+2*x+1}], v8 offset:{(32*hh+4*x)*ST}")
        a("s_lshl_b32 s11, s11, 16")
        a("s_add_u32 s11, s11, s14")
        a("v_add_u32 v9, s11, v7")
        a("s_waitcnt lgkmcnt(0)")
        a(f"global_store_dwordx4 v9, v[{b}:{b+3}], s[32:33]")
        a(f"global_store_dwordx4 v9, v[{b+4}:{b+7}], s[32:33] offset:64")
    a.label("K1_END")
    a("s_endpgm")
    return a.finalize(), 144, 2 * 64 * 928

KERNELS = []
def build(which):
    hdr = open('cdna_kernels/' + NAME + '.s.ref').read().split('; Override')[0]
    launches = ''; text = ''; desc = ''
    for (nm, fn, grid, block) in which:
        body, vg, lds = fn()
        launches += f"; @launch kernel={nm} grid=({grid},1,1) block=({block},1,1) lds={lds}\n"
        text += kernel_header(nm) + body
        desc += kernel_desc(nm, vg)
    s = hdr + launches + '.amdgcn_target "amdgcn-amd-amdhsa--gfx950"\n.text\n' + text + '.section .rodata,"a"\n' + desc
    return s

if __name__ == '__main__':
    ks = [('k1_kernel', gen_k1, 256, 512)]
    open('cdna_kernels/' + NAME + '.s', 'w').write(build(ks))
```

```python
from gen import *

OS = [0, 9, 5, 14, 6, 11, 0, 12]
def gen_k2():
    a = Asm()
    CH = 46080; UB = 9216; CS = 4608
    a("s_cmp_ge_u32 s2, 256")
    a("s_cbranch_scc1 K2_END")
    a("s_load_dwordx2 s[32:33], s[0:1], 112")
    a("s_load_dwordx2 s[30:31], s[0:1], 64")
    a("s_load_dwordx2 s[28:29], s[0:1], 80")
    a("v_lshrrev_b32 v1, 6, v0")
    a("v_readfirstlane_b32 s6, v1")
    a("v_and_b32 v2, 63, v0")
    a("s_cmp_ge_u32 s2, 224")
    a("s_cbranch_scc1 K2_TR")
    a("s_lshr_b32 s8, s6, 2")
    a("s_and_b32 s9, s6, 3")
    a("s_lshl_b32 s4, s2, 1")
    a("s_add_u32 s4, s4, s8")
    a("s_lshl_b32 s5, s4, 12")
    a(f"s_mul_i32 s10, s8, {CH}")
    a("v_and_b32 v3, 0xff, v0")
    a("v_lshlrev_b32 v4, 4, v3")
    a("v_subrev_u32 v5, 32, v4")
    a("s_waitcnt lgkmcnt(0)")
    a("s_add_u32 s12, s32, s5")
    a("s_addc_u32 s13, s33, 0")
    a("s_mov_b32 s14, 4096")
    a("s_mov_b32 s15, 0x00020000")
    a("buffer_load_dwordx4 v[16:19], v5, s[12:15], 0 offen")
    a("buffer_load_dwordx4 v[20:23], v5, s[12:15], 0 offen offset:16")
    add64(a, 34, 12, WS_RHI)
    add64(a, 36, 12, WS_RLO)
    add64(a, 38, 12, WS_XT)
    add64(a, 40, 12, WS_HT)
    a("global_load_dwordx4 v[44:47], v4, s[34:35]")
    a("global_load_dwordx4 v[48:51], v4, s[36:37]")
    a("buffer_load_dwordx4 v[52:55], v4, s[12:15], 0 offen offset:4064")
    a("buffer_load_dwordx4 v[56:59], v4, s[12:15], 0 offen offset:4080")
    a("buffer_load_dwordx4 v[192:195], v4, s[12:15], 0 offen")
    a("global_load_dwordx4 v[196:199], v4, s[38:39]")
    a("s_lshl_b32 s11, s4, 1")
    a("v_mov_b32 v6, s11")
    a("global_load_ushort v200, v6, s[30:31]")
    a("v_add_u32 v6, s10, v4")
    def copies(c0, off):
        for k in range(6): a(f"v_mov_b32 v{24+k}, v{c0+k+1}")
        for k in range(7): a(f"v_alignbyte_b32 v{30+k}, v{c0+k+1}, v{c0+k}, 2")
        for k in range(6): a(f"v_alignbyte_b32 v{38+k}, v{c0+k+2}, v{c0+k+1}, 2")
        src = {0: c0, 2: 24, 4: c0 + 2, 6: 26, 1: 30, 5: 32, 3: 38, 7: 40}
        for s in range(8):
            a(f"ds_write_b128 v6, v[{src[s]}:{src[s]+3}] offset:{UB + s*CS + OS[s]*16 + off}")
    a("s_waitcnt vmcnt(7)")
    copies(16, 0)
    a("s_waitcnt vmcnt(5)")
    a("ds_write_b128 v6, v[44:47]")
    a("ds_write_b128 v6, v[48:51] offset:4608")
    a("s_waitcnt vmcnt(3)")
    a("v_cmp_gt_u32 vcc, 2, v3")
    a("s_and_saveexec_b64 s[42:43], vcc")
    copies(52, 4096)
    a("s_mov_b64 exec, s[42:43]")
    a("v_mov_b32 v24, 0"); a("v_mov_b32 v25, 0"); a("v_mov_b32 v26, 0"); a("v_mov_b32 v27, 0")
    a("v_cmp_gt_u32 vcc, 32, v3")
    a("s_and_saveexec_b64 s[42:43], vcc")
    a("ds_write_b128 v6, v[24:27] offset:4096")
    a("ds_write_b128 v6, v[24:27] offset:8704")
    a("s_mov_b64 exec, s[42:43]")
    a("v_and_b32 v7, 15, v2")
    a("v_lshrrev_b32 v8, 4, v2")
    a("v_lshlrev_b32 v9, 5, v7")
    a("v_lshlrev_b32 v10, 4, v8")
    a("v_sub_u32 v9, v10, v9")
    a("s_lshl_b32 s11, s9, 6")
    a("s_sub_u32 s16, s10, s11")
    a("s_add_u32 s17, s16, 928")
    a("v_add_u32 v9, s17, v9")
    a("v_add_u32 v11, 1, v7")
    a("v_and_b32 v12, 7, v11")
    a("v_lshrrev_b32 v13, 3, v11")
    a("v_add_u32 v13, v13, v8")
    a("v_lshlrev_b32 v14, 2, v12")
    a("s_mov_b32 s18, 0xc0b6e590")
    a("v_lshrrev_b32 v14, v14, s18")
    a("v_and_b32 v14, 15, v14")
    a("v_add_u32 v13, v13, v14")
    a("v_lshlrev_b32 v13, 4, v13")
    a(f"s_movk_i32 s18, {CS}")
    a("v_mul_lo_u32 v12, v12, s18")
    a("v_add_u32 v13, v13, v12")
    a(f"s_add_u32 s17, s16, {UB + 448}")
    a("v_add_u32 v10, s17, v13")
    for r in range(32): a(f"v_mov_b32 v{160+r}, 0")
    a("s_waitcnt lgkmcnt(0)")
    a("s_barrier")
    for gi in range(2):
        if gi == 1:
            a("v_subrev_u32 v9, 0x100, v9")
            a("v_subrev_u32 v10, 0x100, v10")
        for k in range(8):
            a(f"ds_read_b128 v[{128+4*k}:{131+4*k}], v10 offset:{512*k}")
            a(f"ds_read_b128 v[{64+8*k}:{67+8*k}], v9 offset:{512*(7-k)}")
            a(f"ds_read_b128 v[{68+8*k}:{71+8*k}], v9 offset:{512*(7-k)+4608}")
        for k in range(8):
            a(f"s_waitcnt lgkmcnt({min(15, 24-3*(k+1))})")
            pairs = [(k, dl) for dl in range(k + 1)] + [(t, k) for t in range(k)]
            for (t, dl) in pairs:
                if t + dl > 7: continue
                seg = t + dl
                acc = f"v[{160+4*seg}:{163+4*seg}]"
                a(f"v_mfma_f32_16x16x32_bf16 {acc}, v[{64+8*t}:{67+8*t}], v[{128+4*dl}:{131+4*dl}], {acc}")
                a(f"v_mfma_f32_16x16x32_bf16 {acc}, v[{68+8*t}:{71+8*t}], v[{128+4*dl}:{131+4*dl}], {acc}")
    a("s_barrier")
    a("s_lshl_b32 s11, s6, 13")
    a("v_lshlrev_b32 v9, 2, v2")
    a("v_add_u32 v9, s11, v9")
    for r in range(32):
        a(f"ds_write_b32 v9, v{160+r} offset:{256*r}")
    a("s_waitcnt lgkmcnt(0)")
    a("s_barrier")
    a("v_lshrrev_b32 v9, 5, v3")
    a("v_bfe_u32 v10, v3, 1, 4")
    a("v_and_b32 v11, 3, v10")
    a("v_lshl_add_u32 v9, v9, 2, v11")
    a("v_lshlrev_b32 v9, 8, v9")
    a("v_lshrrev_b32 v10, 2, v10")
    a("v_lshl_add_u32 v9, v10, 6, v9")
    a("v_and_b32 v11, 1, v3")
    a("v_lshl_add_u32 v9, v11, 5, v9")
    a("s_lshl_b32 s11, s8, 15")
    a("v_add_u32 v9, s11, v9")
    for w in range(4):
        a(f"ds_read_b128 v[{64+8*w}:{67+8*w}], v9 offset:{8192*w}")
        a(f"ds_read_b128 v[{68+8*w}:{71+8*w}], v9 offset:{8192*w+16}")
    a("s_mov_b32 s44, 0xffff0000")
    a("s_waitcnt vmcnt(0)")
    a("v_lshlrev_b32 v200, 16, v200")
    a("s_waitcnt lgkmcnt(0)")
    for e in range(8):
        a(f"v_add_f32 v{64+e}, v{64+e}, v{72+e}")
        a(f"v_add_f32 v{80+e}, v{80+e}, v{88+e}")
        a(f"v_add_f32 v{64+e}, v{64+e}, v{80+e}")
    for k in range(4):
        a(f"v_cvt_pk_bf16_f32 v24, v{64+2*k}, v{65+2*k}")
        a(f"v_lshlrev_b32 v25, 16, v{192+k}")
        a(f"v_and_b32 v26, s44, v{192+k}")
        a(f"v_mul_f32 v25, v25, v200")
        a(f"v_mul_f32 v26, v26, v200")
        a(f"v_cvt_pk_bf16_f32 v27, v25, v26")
        a(f"v_lshlrev_b32 v25, 16, v24")
        a(f"v_and_b32 v26, s44, v24")
        a(f"v_lshlrev_b32 v28, 16, v27")
        a(f"v_and_b32 v29, s44, v27")
        a(f"v_add_f32 v25, v25, v28")
        a(f"v_add_f32 v26, v26, v29")
        a(f"v_cvt_pk_bf16_f32 v24, v25, v26")
        a(f"v_lshlrev_b32 v25, 16, v24")
        a(f"v_and_b32 v26, s44, v24")
        a(f"v_lshlrev_b32 v28, 16, v{196+k}")
        a(f"v_and_b32 v29, s44, v{196+k}")
        a(f"v_add_f32 v25, v25, v28")
        a(f"v_add_f32 v26, v26, v29")
        a(f"v_cvt_pk_bf16_f32 v{32+k}, v25, v26")
    a("global_store_dwordx4 v4, v[32:35], s[40:41]")
    a("s_endpgm")
    a.label("K2_TR")
    a("s_sub_u32 s3, s2, 224")
    a("s_lshl_b32 s3, s3, 3")
    a("s_add_u32 s3, s3, s6")
    a("s_mul_i32 s7, s6, 5120")
    a("v_lshrrev_b32 v3, 3, v2")
    a("v_and_b32 v4, 7, v2")
    a("s_movk_i32 s8, 3584")
    a("v_mul_lo_u32 v5, v3, s8")
    a("v_lshl_add_u32 v5, v4, 4, v5")
    a("s_movk_i32 s8, 160")
    a("v_mul_lo_u32 v6, v3, s8")
    a("v_lshl_add_u32 v6, v4, 4, v6")
    a("v_add_u32 v6, s7, v6")
    a("v_lshrrev_b32 v7, 4, v2")
    a("v_bfe_u32 v8, v2, 2, 2")
    a("v_lshl_add_u32 v7, v7, 2, v8")
    a("v_mul_lo_u32 v7, v7, s8")
    a("v_and_b32 v8, 3, v2")
    a("v_lshl_add_u32 v7, v8, 4, v7")
    a("v_add_u32 v7, s7, v7")
    a("v_lshlrev_b32 v8, 4, v2")
    a("s_waitcnt lgkmcnt(0)")
    add64(a, 34, 32, WS_W1F)
    a.label("K2_TRL")
    a("s_cmp_ge_u32 s3, 392")
    a("s_cbranch_scc1 K2_END")
    a("s_mul_i32 s9, s3, 9363")
    a("s_lshr_b32 s9, s9, 18")
    a("s_mul_i32 s10, s9, 28")
    a("s_sub_u32 s10, s3, s10")
    a("s_mul_i32 s11, s9, 114688")
    a("s_lshl_b32 s12, s10, 7")
    a("s_add_u32 s11, s11, s12")
    a("v_add_u32 v9, s11, v5")
    for i in range(4):
        if i: a(f"v_add_u32 v9, {8*3584}, v9")
        a(f"global_load_dwordx4 v[{16+4*i}:{19+4*i}], v9, s[28:29]")
    for i in range(4):
        a(f"s_waitcnt vmcnt({3-i})")
        a(f"ds_write_b128 v6, v[{16+4*i}:{19+4*i}] offset:{8*160*i}")
    a("s_waitcnt lgkmcnt(0)")
    for fgl in range(2):
        for T in range(2):
            b = 32 + 8 * fgl + 4 * T
            a(f"ds_read_b64_tr_b16 v[{b}:{b+1}], v7 offset:{64*fgl+8*T}")
            a(f"ds_read_b64_tr_b16 v[{b+2}:{b+3}], v7 offset:{64*fgl+8*T+16*160}")
    a("s_mul_i32 s11, s10, 57344")
    a("s_lshl_b32 s12, s9, 11")
    a("s_add_u32 s11, s11, s12")
    a("v_add_u32 v9, s11, v8")
    a("v_add_u32 v10, 28672, v9")
    a("s_waitcnt lgkmcnt(0)")
    a("global_store_dwordx4 v9, v[32:35], s[34:35]")
    a("global_store_dwordx4 v9, v[36:39], s[34:35] offset:1024")
    a("global_store_dwordx4 v10, v[40:43], s[34:35]")
    a("global_store_dwordx4 v10, v[44:47], s[34:35] offset:1024")
    a("s_add_u32 s3, s3, 256")
    a("s_branch K2_TRL")
    a.label("K2_END")
    a("s_endpgm")
    return a.finalize(), 208, 2 * CH

if __name__ == '__main__':
    ks = [('k1_kernel', gen_k1, 256, 512), ('k2_kernel', gen_k2, 256, 512)]
    open('cdna_kernels/' + NAME + '.s', 'w').write(build(ks))
```

```python
from gen2 import *

def tile_ids(a):
    a("s_and_b32 s3, s2, 7")
    a("s_lshl_b32 s3, s3, 2")
    a("s_bfe_u32 s4, s2, 0x20003")
    a("s_add_u32 s3, s3, s4")
    a("s_lshr_b32 s4, s2, 5")

def gen_k3():
    a = Asm()
    PART = 0; FIN = 4096; AT = 4608
    a("s_cmp_ge_u32 s2, 256")
    a("s_cbranch_scc1 K3_END")
    a("s_load_dwordx2 s[32:33], s[0:1], 112")
    a("s_load_dwordx2 s[28:29], s[0:1], 88")
    a("v_lshrrev_b32 v1, 6, v0")
    a("v_readfirstlane_b32 s6, v1")
    a("v_and_b32 v2, 63, v0")
    a("s_cmp_ge_u32 s2, 224")
    a("s_cbranch_scc1 K3_TR")
    tile_ids(a)
    a("s_lshl_b32 s5, s3, 7")
    a("v_and_b32 v3, 7, v0")
    a("v_lshrrev_b32 v4, 3, v0")
    a("v_lshlrev_b32 v5, 4, v3")
    a("v_add_u32 v5, s5, v5")
    a("v_lshl_add_u32 v6, v4, 12, v5")
    a("v_lshlrev_b32 v7, 1, v0")
    a("v_add_u32 v7, s5, v7")
    a("s_waitcnt lgkmcnt(0)")
    a(f"s_add_u32 s12, s32, {hex(WS_HT)}")
    a("s_addc_u32 s13, s33, 0")
    a("s_mov_b32 s14, 0x1c0000")
    a("s_mov_b32 s15, 0x00020000")
    a(f"s_add_u32 s16, s32, {hex(WS_W1F)}")
    a("s_addc_u32 s17, s33, 0")
    a("s_mov_b32 s18, 0x188000")
    a("s_mov_b32 s19, 0x00020000")
    for i in range(7):
        a(f"s_mov_b32 s{20+i}, {hex(i*262144)}")
    for i in range(7):
        a(f"buffer_load_dwordx4 v[{16+4*i}:{19+4*i}], v6, s[12:15], s{20+i} offen")
    a("buffer_load_dwordx4 v[44:47], v5, s[12:15], 0 offen")
    a("buffer_load_ushort v8, v7, s[12:15], 0 offen")
    a("s_lshl_b32 s7, s4, 3")
    a("s_add_u32 s7, s7, s6")
    a("s_mul_i32 s8, s7, 28672")
    a("v_lshlrev_b32 v9, 4, v2")
    a("v_add_u32 v10, s8, v9")
    for i in range(7):
        a(f"s_mov_b32 s{34+i}, {i*4096}")
    for k in range(28):
        a(f"buffer_load_dwordx4 v[{128+4*k}:{131+4*k}], v10, s[16:19], s{34+k//4} offen offset:{(k%4)*1024}")
    a("s_mov_b32 s44, 0xffff0000")
    a("s_waitcnt vmcnt(29)")
    for k in range(4):
        a(f"v_lshlrev_b32 v{104+2*k}, 16, v{44+k}")
        a(f"v_and_b32 v{105+2*k}, s44, v{44+k}")
    for r in range(16): a(f"v_mov_b32 v{112+r}, 0")
    for i in range(7):
        for k in range(4):
            a(f"v_lshlrev_b32 v{48+8*i+2*k}, 16, v{16+4*i+k}")
            a(f"v_and_b32 v{49+8*i+2*k}, s44, v{16+4*i+k}")
        for r in range(8):
            a(f"v_sub_f32 v{12+(r&3)}, v{48+8*i+r}, v{104+r}")
            a(f"v_add_f32 v{112+r}, v{112+r}, v{12+(r&3)}")
            a(f"v_fma_f32 v{120+r}, v{12+(r&3)}, v{12+(r&3)}, v{120+r}")
    for k in range(8):
        a(f"v_permlane32_swap_b32 v{112+k}, v{120+k}")
    for k in range(8):
        a(f"v_add_f32 v{112+k}, v{112+k}, v{120+k}")
    for k in range(4):
        a(f"v_permlane16_swap_b32 v{112+k}, v{116+k}")
    for k in range(4):
        a(f"v_add_f32 v{112+k}, v{112+k}, v{116+k}")
    for k in range(4):
        a(f"v_add_f32_dpp v{112+k}, v{112+k}, v{112+k} row_ror:8 row_mask:0xf bank_mask:0xf")
    a("v_lshrrev_b32 v12, 5, v2")
    a("v_bfe_u32 v13, v2, 4, 1")
    a("v_lshlrev_b32 v14, 5, v3")
    a("v_lshl_add_u32 v14, v13, 4, v14")
    a("v_lshl_add_u32 v14, v12, 8, v14")
    a("s_lshl_b32 s9, s6, 9")
    a("v_add_u32 v14, s9, v14")
    a(f"ds_write_b128 v14, v[112:115] offset:{PART}")
    a("s_waitcnt lgkmcnt(0)")
    a("s_barrier")
    a("s_cmp_lg_u32 s6, 0")
    a("s_cbranch_scc1 K3_SKIP")
    a("v_lshlrev_b32 v12, 2, v2")
    for w in range(8):
        a(f"ds_read_b32 v{112+w}, v12 offset:{PART + 512*w}")
        a(f"ds_read_b32 v{120+w}, v12 offset:{PART + 512*w + 256}")
    a("s_waitcnt lgkmcnt(0)")
    for st in (112, 120):
        a(f"v_add_f32 v{st}, v{st}, v{st+1}")
        a(f"v_add_f32 v{st+2}, v{st+2}, v{st+3}")
        a(f"v_add_f32 v{st+4}, v{st+4}, v{st+5}")
        a(f"v_add_f32 v{st+6}, v{st+6}, v{st+7}")
        a(f"v_add_f32 v{st}, v{st}, v{st+2}")
        a(f"v_add_f32 v{st+4}, v{st+4}, v{st+6}")
        a(f"v_add_f32 v{st}, v{st}, v{st+4}")
    a(f"s_mov_b32 s9, {f32bits(1.0/448)}")
    a("v_mul_f32 v112, s9, v112")
    a("v_mul_f32 v120, s9, v120")
    a("v_fma_f32 v120, -v112, v112, v120")
    a("v_max_f32 v120, 0, v120")
    a("s_waitcnt vmcnt(28)")
    a("v_lshlrev_b32 v8, 16, v8")
    a("v_add_f32 v112, v8, v112")
    a("v_cvt_pk_bf16_f32 v13, v112, v120")
    a("v_lshlrev_b32 v112, 16, v13")
    a("v_and_b32 v120, s44, v13")
    a(f"v_add_f32 v120, {f32bits(1e-5)}, v120")
    a("v_cvt_pk_bf16_f32 v120, v120, v120")
    a("v_lshlrev_b32 v120, 16, v120")
    a("v_sqrt_f32 v120, v120")
    a("v_cvt_pk_bf16_f32 v120, v120, v120")
    a("v_lshlrev_b32 v120, 16, v120")
    a("v_rcp_f32 v120, v120")
    a(f"ds_write_b32 v12, v112 offset:{FIN}")
    a(f"ds_write_b32 v12, v120 offset:{FIN+256}")
    a("s_waitcnt lgkmcnt(0)")
    a.label("K3_SKIP")
    a("s_barrier")
    a("v_lshlrev_b32 v12, 5, v3")
    a(f"ds_read_b128 v[104:107], v12 offset:{FIN}")
    a(f"ds_read_b128 v[108:111], v12 offset:{FIN+16}")
    a(f"ds_read_b128 v[112:115], v12 offset:{FIN+256}")
    a(f"ds_read_b128 v[116:119], v12 offset:{FIN+272}")
    a("s_movk_i32 s9, 160")
    a("v_mul_lo_u32 v13, v4, s9")
    a("v_lshl_add_u32 v13, v3, 4, v13")
    a(f"v_add_u32 v13, {AT}, v13")
    a("s_waitcnt lgkmcnt(0)")
    for i in range(7):
        for k in range(4):
            x0 = 48 + 8 * i + 2 * k; x1 = x0 + 1
            a(f"v_sub_f32 v{x0}, v{x0}, v{104+2*k}")
            a(f"v_sub_f32 v{x1}, v{x1}, v{105+2*k}")
            a(f"v_cvt_pk_bf16_f32 v{12+2*(k&1)}, v{x0}, v{x1}")
            a(f"v_lshlrev_b32 v{x0}, 16, v{12+2*(k&1)}")
            a(f"v_and_b32 v{x1}, s44, v{12+2*(k&1)}")
            a(f"v_mul_f32 v{x0}, v{x0}, v{112+2*k}")
            a(f"v_mul_f32 v{x1}, v{x1}, v{113+2*k}")
            a(f"v_cvt_pk_bf16_f32 v{16+4*i+k}, v{x0}, v{x1}")
        a(f"ds_write_b128 v13, v[{16+4*i}:{19+4*i}] offset:{64*160*i}")
    a("v_lshrrev_b32 v4, 4, v2")
    a("v_bfe_u32 v5, v2, 2, 2")
    a("v_lshl_add_u32 v4, v4, 2, v5")
    a("v_mul_lo_u32 v4, v4, s9")
    a("v_and_b32 v5, 3, v2")
    a("v_lshl_add_u32 v4, v5, 3, v4")
    a(f"v_add_u32 v4, {AT}, v4")
    a("v_add_u32 v5, 35840, v4")
    for r in range(32): a(f"v_mov_b32 v{96+r}, 0")
    a("s_waitcnt lgkmcnt(0)")
    a("s_barrier")
    def trreads(s):
        b = 16 + 16 * (s & 1)
        base = 'v4' if s < 7 else 'v5'; so = (s % 7) * 5120
        out = []
        for mt in range(4):
            out.append(f"ds_read_b64_tr_b16 v[{b+4*mt}:{b+4*mt+1}], {base} offset:{so+32*mt}")
            out.append(f"ds_read_b64_tr_b16 v[{b+4*mt+2}:{b+4*mt+3}], {base} offset:{so+32*mt+2560}")
        return out
    for x in trreads(0): a(x)
    for s in range(14):
        if s < 13:
            for x in trreads(s + 1): a(x)
            a(f"s_waitcnt vmcnt({26-2*s}) lgkmcnt(8)")
        else:
            a(f"s_waitcnt vmcnt(0) lgkmcnt(0)")
        b = 16 + 16 * (s & 1)
        for mt in range(4):
            for T in range(2):
                acc = f"v[{96+16*T+4*mt}:{99+16*T+4*mt}]"
                w = 128 + 8 * s + 4 * T
                a(f"v_mfma_f32_16x16x32_bf16 {acc}, v[{w}:{w+3}], v[{b+4*mt}:{b+4*mt+3}], {acc}")
    a("s_mul_i32 s8, s3, 229376")
    a("s_lshl_b32 s9, s7, 10")
    a("s_add_u32 s8, s8, s9")
    a("v_add_u32 v10, s8, v9")
    add64(a, 34, 32, WS_H1F)
    for mt in range(4):
        for T in range(2):
            for r in range(4):
                a(f"v_max_f32 v{96+16*T+4*mt+r}, 0, v{96+16*T+4*mt+r}")
        o = 48 + 4 * mt
        a(f"v_cvt_pk_bf16_f32 v{o}, v{96+4*mt}, v{97+4*mt}")
        a(f"v_cvt_pk_bf16_f32 v{o+1}, v{98+4*mt}, v{99+4*mt}")
        a(f"v_cvt_pk_bf16_f32 v{o+2}, v{112+4*mt}, v{113+4*mt}")
        a(f"v_cvt_pk_bf16_f32 v{o+3}, v{114+4*mt}, v{115+4*mt}")
        if mt: a(f"v_add_u32 v10, 57344, v10")
        a(f"global_store_dwordx4 v10, v[{o}:{o+3}], s[34:35]")
    a("s_endpgm")
    a.label("K3_TR")
    a("s_sub_u32 s3, s2, 224")
    a("s_lshl_b32 s3, s3, 3")
    a("s_add_u32 s3, s3, s6")
    a("s_mul_i32 s7, s6, 5120")
    a("v_lshrrev_b32 v3, 3, v2")
    a("v_and_b32 v4, 7, v2")
    a("s_movk_i32 s8, 896")
    a("v_mul_lo_u32 v5, v3, s8")
    a("v_lshl_add_u32 v5, v4, 4, v5")
    a("s_movk_i32 s8, 160")
    a("v_mul_lo_u32 v6, v3, s8")
    a("v_lshl_add_u32 v6, v4, 4, v6")
    a("v_add_u32 v6, s7, v6")
    a("v_lshrrev_b32 v7, 4, v2")
    a("v_bfe_u32 v8, v2, 2, 2")
    a("v_lshl_add_u32 v7, v7, 3, v8")
    a("v_mul_lo_u32 v7, v7, s8")
    a("v_and_b32 v8, 3, v2")
    a("v_lshl_add_u32 v7, v8, 3, v7")
    a("v_add_u32 v7, s7, v7")
    a("v_lshlrev_b32 v8, 4, v2")
    a("s_waitcnt lgkmcnt(0)")
    add64(a, 34, 32, WS_W2F)
    a.label("K3_TRL")
    a("s_cmp_ge_u32 s3, 392")
    a("s_cbranch_scc1 K3_END")
    a("s_mul_i32 s9, s3, 9363")
    a("s_lshr_b32 s9, s9, 16")
    a("s_mul_i32 s10, s9, 7")
    a("s_sub_u32 s10, s3, s10")
    a("s_mul_i32 s11, s9, 28672")
    a("s_lshl_b32 s12, s10, 7")
    a("s_add_u32 s11, s11, s12")
    a("v_add_u32 v9, s11, v5")
    for i in range(4):
        if i: a(f"v_add_u32 v9, {8*896}, v9")
        a(f"global_load_dwordx4 v[{16+4*i}:{19+4*i}], v9, s[28:29]")
    for i in range(4):
        a(f"s_waitcnt vmcnt({3-i})")
        a(f"ds_write_b128 v6, v[{16+4*i}:{19+4*i}] offset:{8*160*i}")
    a("s_waitcnt lgkmcnt(0)")
    for T in range(4):
        b = 32 + 4 * T
        a(f"ds_read_b64_tr_b16 v[{b}:{b+1}], v7 offset:{32*T}")
        a(f"ds_read_b64_tr_b16 v[{b+2}:{b+3}], v7 offset:{32*T+4*160}")
    a("s_mul_i32 s11, s10, 229376")
    a("s_lshl_b32 s12, s9, 12")
    a("s_add_u32 s11, s11, s12")
    a("v_add_u32 v9, s11, v8")
    a("s_waitcnt lgkmcnt(0)")
    for T in range(4):
        a(f"global_store_dwordx4 v9, v[{32+4*T}:{35+4*T}], s[34:35] offset:{1024*T}")
    a("s_add_u32 s3, s3, 256")
    a("s_branch K3_TRL")
    a.label("K3_END")
    a("s_endpgm")
    return a.finalize(), 240, 76288

def gen_k4():
    a = Asm()
    RS = 272; WSZ = 64 * RS
    a("s_cmp_ge_u32 s2, 224")
    a("s_cbranch_scc1 K4_END")
    a("s_load_dwordx2 s[32:33], s[0:1], 112")
    a("s_load_dwordx2 s[30:31], s[0:1], 96")
    a("v_lshrrev_b32 v1, 6, v0")
    a("v_readfirstlane_b32 s6, v1")
    a("v_and_b32 v2, 63, v0")
    tile_ids(a)
    a("v_lshlrev_b32 v9, 4, v2")
    a("s_waitcnt lgkmcnt(0)")
    a(f"s_add_u32 s12, s32, {hex(WS_H1F)}")
    a("s_addc_u32 s13, s33, 0")
    a("s_mov_b32 s14, 0x700000")
    a("s_mov_b32 s15, 0x00020000")
    a(f"s_add_u32 s16, s32, {hex(WS_W2F)}")
    a("s_addc_u32 s17, s33, 0")
    a("s_mov_b32 s18, 0x188000")
    a("s_mov_b32 s19, 0x00020000")
    a(f"s_add_u32 s20, s32, {hex(WS_HT)}")
    a("s_addc_u32 s21, s33, 0")
    a("s_mov_b32 s22, 0x1c0000")
    a("s_mov_b32 s23, 0x00020000")
    a("s_mul_i32 s8, s3, 229376")
    a("s_mul_i32 s9, s6, 7168")
    a("s_add_u32 s8, s8, s9")
    a("v_add_u32 v10, s8, v9")
    a("s_mul_i32 s8, s4, 229376")
    a("s_mul_i32 s9, s6, 28672")
    a("s_add_u32 s8, s8, s9")
    a("v_add_u32 v11, s8, v9")
    for mt in range(4):
        a(f"s_mov_b32 s{34+mt}, {mt*57344}")
        a(f"s_mov_b32 s{38+mt}, {mt*57344+4096}")
    for k in range(8):
        a(f"s_mov_b32 s{44+k}, {k*4096}")
    NB = 5
    def loads(ks):
        b = 80 + 32 * (ks % NB)
        out = []
        for mt in range(4):
            so = 34 + mt if ks < 4 else 38 + mt
            out.append(f"buffer_load_dwordx4 v[{b+4*mt}:{b+4*mt+3}], v10, s[12:15], s{so} offen offset:{(ks%4)*1024}")
        for T in range(4):
            out.append(f"buffer_load_dwordx4 v[{b+16+4*T}:{b+19+4*T}], v11, s[16:19], s{44+ks} offen offset:{T*1024}")
        return out
    for ks in range(NB):
        for x in loads(ks): a(x)
    a("v_lshrrev_b32 v3, 3, v0")
    a("v_and_b32 v4, 7, v0")
    a("s_lshl_b32 s8, s4, 18")
    a("s_lshl_b32 s9, s3, 7")
    a("s_add_u32 s8, s8, s9")
    a("v_lshlrev_b32 v5, 15, v4")
    a("v_lshl_add_u32 v5, v3, 1, v5")
    a("v_add_u32 v5, s8, v5")
    for e in range(8):
        a(f"buffer_load_ushort v{240+e}, v5, s[20:23], s{44+e} offen")
    for r in range(64): a(f"v_mov_b32 v{16+r}, 0")
    issued = 48
    done_order = []
    for ks in range(7):
        if ks < NB:
            pos = 8 * (ks + 1)
        else:
            pos = 48 + 8 * (ks - NB + 1)
        a(f"s_waitcnt vmcnt({issued - pos})")
        b = 80 + 32 * (ks % NB)
        for T in range(4):
            for mt in range(4):
                acc = f"v[{16+16*T+4*mt}:{19+16*T+4*mt}]"
                a(f"v_mfma_f32_16x16x32_bf16 {acc}, v[{b+16+4*T}:{b+19+4*T}], v[{b+4*mt}:{b+4*mt+3}], {acc}")
        if ks + NB < 7:
            for x in loads(ks + NB): a(x)
            issued += 8
    a("v_and_b32 v6, 15, v2")
    a("v_lshrrev_b32 v7, 4, v2")
    a(f"s_movk_i32 s8, {RS}")
    a("v_mul_lo_u32 v6, v6, s8")
    a("v_lshl_add_u32 v6, v7, 4, v6")
    a(f"s_mul_i32 s9, s6, {WSZ}")
    a("v_add_u32 v6, s9, v6")
    for T in range(4):
        for mt in range(4):
            a(f"ds_write_b128 v6, v[{16+16*T+4*mt}:{19+16*T+4*mt}] offset:{mt*16*RS + 64*T}")
    a("s_waitcnt lgkmcnt(0)")
    a("s_barrier")
    a("v_mul_lo_u32 v6, v3, s8")
    a("v_lshl_add_u32 v6, v4, 5, v6")
    a(f"v_add_u32 v7, {4*WSZ}, v6")
    for w in range(8):
        base = 'v6' if w < 4 else 'v7'
        a(f"ds_read_b128 v[{80+8*w}:{83+8*w}], {base} offset:{(w%4)*WSZ}")
        a(f"ds_read_b128 v[{84+8*w}:{87+8*w}], {base} offset:{(w%4)*WSZ+16}")
    a("s_mov_b32 s44, 0xffff0000")
    a("s_waitcnt lgkmcnt(0)")
    for e in range(8):
        a(f"v_add_f32 v{80+e}, v{80+e}, v{88+e}")
        a(f"v_add_f32 v{96+e}, v{96+e}, v{104+e}")
        a(f"v_add_f32 v{112+e}, v{112+e}, v{120+e}")
        a(f"v_add_f32 v{128+e}, v{128+e}, v{136+e}")
        a(f"v_add_f32 v{80+e}, v{80+e}, v{96+e}")
        a(f"v_add_f32 v{112+e}, v{112+e}, v{128+e}")
        a(f"v_add_f32 v{80+e}, v{80+e}, v{112+e}")
    for k in range(4):
        a(f"v_cvt_pk_bf16_f32 v12, v{80+2*k}, v{81+2*k}")
        a(f"v_lshlrev_b32 v13, 16, v12")
        a(f"v_and_b32 v14, s44, v12")
        a(f"v_lshlrev_b32 v{240+2*k}, 16, v{240+2*k}")
        a(f"v_lshlrev_b32 v{241+2*k}, 16, v{241+2*k}")
        a(f"v_add_f32 v13, v13, v{240+2*k}")
        a(f"v_add_f32 v14, v14, v{241+2*k}")
        a(f"v_cvt_pk_bf16_f32 v{16+k}, v13, v14")
    a("s_lshl_b32 s8, s3, 6")
    a("v_add_u32 v5, s8, v3")
    a("s_movk_i32 s9, 896")
    a("v_mul_lo_u32 v5, v5, s9")
    a("v_lshl_add_u32 v5, v4, 4, v5")
    a("s_lshl_b32 s8, s4, 7")
    a("v_add_u32 v5, s8, v5")
    a("global_store_dwordx4 v5, v[16:19], s[30:31]")
    a.label("K4_END")
    a("s_endpgm")
    return a.finalize(), 248, 8 * WSZ

if __name__ == '__main__':
    ks = [('k1_kernel', gen_k1, 256, 512), ('k2_kernel', gen_k2, 256, 512), ('k3_kernel', gen_k3, 256, 512), ('k4_kernel', gen_k4, 224, 512)]
    open('cdna_kernels/' + NAME + '.s', 'w').write(build(ks))
```

```python
import sys
sys.path.insert(0, 'work')
from asmlib import *

NAME = 'sequential_preLN__ssm_conv_s4__dense_activation_relu__prompt'
WS_UT, WS_XT, WS_RHI, WS_RLO, WS_HT, WS_W1F, WS_W2F, WS_H1F = 0x0, 0x200000, 0x400000, 0x600000, 0x800000, 0xA00000, 0xC00000, 0x1000000

def f32bits(x):
    import struct
    return '0x%08x' % struct.unpack('<I', struct.pack('<f', x))[0]

L2E = '0x3fb8aa3b'; L2E_LO = '0x32a57060'; LN2 = '0x3f317218'; INV2PI = '0x3e22f983'

def add64(a, dst, src, off):
    a(f"s_add_u32 s{dst}, s{src}, {hex(off)}")
    a(f"s_addc_u32 s{dst+1}, s{src+1}, 0")

def interleave(main, side, start=0):
    if not side: return list(main)
    out = []; n = len(main); k = len(side)
    step = max(1, (n - start) // k)
    si = 0
    for i, m in enumerate(main):
        out.append(m)
        if i >= start and (i - start) % step == step - 1 and si < k:
            out.append(side[si]); si += 1
    out += side[si:]
    return out

def gen_k1():
    a = Asm()
    a("s_cmp_ge_u32 s2, 256")
    a("s_cbranch_scc1 K1_END")
    a("s_load_dwordx16 s[16:31], s[0:1], 0")
    a("s_load_dwordx2 s[32:33], s[0:1], 112")
    a("v_lshrrev_b32 v1, 6, v0")
    a("v_readfirstlane_b32 s6, v1")
    a("v_and_b32 v2, 63, v0")
    a("s_cmp_ge_u32 s2, 224")
    a("s_cbranch_scc1 K1_LN")
    a("v_lshlrev_b32 v3, 1, v0")
    a("s_lshl_b32 s3, s2, 10")
    a("v_add_u32 v3, s3, v3")
    a("v_lshrrev_b32 v4, 8, v0")
    a("s_lshl_b32 s4, s2, 1")
    a("v_add_u32 v4, s4, v4")
    a("v_lshlrev_b32 v5, 1, v4")
    a("s_waitcnt lgkmcnt(0)")
    for i, sp in enumerate((18, 20, 22, 24, 26, 28)):
        a(f"global_load_ushort v{8+i}, v3, s[{sp}:{sp+1}]")
    a("global_load_ushort v14, v5, s[30:31]")
    a(f"s_mov_b32 s40, {L2E}")
    a(f"s_mov_b32 s41, {L2E_LO}")
    a(f"s_mov_b32 s42, {LN2}")
    a(f"s_mov_b32 s43, {INV2PI}")
    a("s_mov_b32 s44, 0xffff0000")
    a("s_mov_b32 s45, 0x07060302")
    a("s_waitcnt vmcnt(0)")
    a.lines.append("; STAMP")
    for i in range(7):
        a(f"v_lshlrev_b32 v{8+i}, 16, v{8+i}")
    a("v_mul_f32 v15, s40, v14")
    a("v_fma_f32 v16, v14, s40, -v15")
    a("v_fma_f32 v16, v14, s41, v16")
    a("v_exp_f32 v17, v15")
    a("v_mul_f32 v16, s42, v16")
    a("v_fma_f32 v17, v17, v16, v17")
    a("v_cvt_pk_bf16_f32 v17, v17, v17")
    a("v_lshlrev_b32 v17, 16, v17")
    a("v_mul_f32 v20, v17, v8")
    a("v_mul_f32 v21, v17, v9")
    a("v_mul_f32 v20, s40, v20")
    a("v_mul_f32 v21, s43, v21")
    a("v_mul_f32 v18, v17, v10")
    a("v_mul_f32 v19, v17, v11")
    a("v_mul_f32 v22, v12, v18")
    a("v_fma_f32 v22, -v13, v19, v22")
    a("v_mul_f32 v23, v12, v19")
    a("v_fma_f32 v23, v13, v18, v23")
    a("v_lshlrev_b32 v24, 4, v0")
    a("ds_write_b128 v24, v[20:23]")
    a("v_and_b32 v3, 15, v2")
    a("v_lshrrev_b32 v4, 4, v2")
    a("v_lshlrev_b32 v5, 3, v3")
    a("v_cvt_f32_u32 v5, v5")
    def bases(row, o0, o1, o2, t0, t1):
        a(f"v_and_b32 {t0}, 7, {row}")
        a(f"v_lshrrev_b32 {t1}, 3, {row}")
        a(f"v_lshl_add_u32 {o0}, {t1}, 7, {t0}")
        a(f"v_and_b32 {t0}, 3, {row}")
        a(f"v_lshlrev_b32 {t0}, 1, {t0}")
        a(f"v_bfe_u32 {t1}, {row}, 2, 1")
        a(f"v_lshl_add_u32 {t0}, {t1}, 7, {t0}")
        a(f"v_add_u32 {t0}, 0x100, {t0}")
        a(f"v_and_b32 {t1}, 1, {row}")
        a(f"v_lshlrev_b32 {t1}, 2, {t1}")
        a(f"v_bfe_u32 {o2}, {row}, 1, 2")
        a(f"v_lshl_add_u32 {t1}, {o2}, 7, {t1}")
        a(f"v_add_u32 {t1}, 0x200, {t1}")
        a(f"v_cmp_gt_u32 vcc, 8, {row}")
        a(f"v_cndmask_b32 {o1}, {t1}, {t0}, vcc")
        a(f"v_lshlrev_b32 {o2}, 7, {row}")
        a(f"v_add_u32 {o2}, 0x400, {o2}")
    bases('v3', 'v6', 'v7', 'v8', 'v9', 'v10')
    a("v_cvt_f32_u32 v6, v6")
    a("v_cvt_f32_u32 v7, v7")
    a("v_cvt_f32_u32 v8, v8")
    a("s_lshl_b32 s7, s6, 10")
    a("v_lshlrev_b32 v9, 6, v4")
    a("v_add_u32 v9, s7, v9")
    for r in range(12):
        a(f"v_mov_b32 v{16+r}, 0")
    a("s_waitcnt lgkmcnt(0)")
    a("s_barrier")
    a.lines.append("; STAMP")
    FX = ['v5', 'v6', 'v7', 'v8']
    def frag(setid, X, hl):
        return 80 + 32 * setid + 8 * X + 4 * hl
    def mfmas(setid):
        out = []
        for b in range(3):
            acc = f"v[{16+4*b}:{19+4*b}]"
            Fh = frag(setid, b + 1, 0); Fl = frag(setid, b + 1, 1); Gh = frag(setid, 0, 0); Gl = frag(setid, 0, 1)
            out.append(f"v_mfma_f32_16x16x32_bf16 {acc}, v[{Fh}:{Fh+3}], v[{Gh}:{Gh+3}], {acc}")
            out.append(f"v_mfma_f32_16x16x32_bf16 {acc}, v[{Fh}:{Fh+3}], v[{Gl}:{Gl+3}], {acc}")
            out.append(f"v_mfma_f32_16x16x32_bf16 {acc}, v[{Fl}:{Fl+3}], v[{Gh}:{Gh+3}], {acc}")
        return out
    for e in range(4):
        a(f"ds_read_b128 v[{28+4*e}:{31+4*e}], v9 offset:{e*16}")
    for s in range(4):
        body = []
        st = s & 1
        for e in range(4):
            P = 28 + 4 * e
            body.append(f"s_waitcnt lgkmcnt({3 if s < 3 else 3-e})")
            zr = [44 + X for X in range(4)]; zi = [48 + X for X in range(4)]
            er = [52 + X for X in range(4)]; sn = [56 + X for X in range(4)]; cs = [60 + X for X in range(4)]
            for X in range(4): body.append(f"v_mul_f32 v{zr[X]}, v{P}, {FX[X]}")
            for X in range(4): body.append(f"v_mul_f32 v{zi[X]}, v{P+1}, {FX[X]}")
            for X in range(4): body.append(f"v_exp_f32 v{er[X]}, v{zr[X]}")
            for X in range(4): body.append(f"v_fract_f32 v{zi[X]}, v{zi[X]}")
            for X in range(4): body.append(f"v_sin_f32 v{sn[X]}, v{zi[X]}")
            for X in range(4): body.append(f"v_cos_f32 v{cs[X]}, v{zi[X]}")
            for X in range(4): body.append(f"v_mul_f32 v{sn[X]}, v{er[X]}, v{sn[X]}")
            for X in range(4): body.append(f"v_mul_f32 v{cs[X]}, v{er[X]}, v{cs[X]}")
            body.append(f"v_mul_f32 v64, v{P+2}, v{cs[0]}")
            body.append(f"v_mul_f32 v65, v{P+2}, v{sn[0]}")
            body.append(f"v_fma_f32 v64, -v{P+3}, v{sn[0]}, v64")
            body.append(f"v_fma_f32 v65, -v{P+3}, v{cs[0]}, -v65")
            if s < 3:
                body.append(f"ds_read_b128 v[{P}:{P+3}], v9 offset:{(s+1)*256+e*16}")
            vals = [(64, 65)] + [(cs[X], sn[X]) for X in range(1, 4)]
            order = [1, 2, 3, 0]
            for X in order:
                r, i = vals[X]
                body.append(f"v_perm_b32 v{frag(st,X,0)+e}, v{i}, v{r}, s45")
                body.append(f"v_and_b32 v{66+2*X}, s44, v{r}")
                body.append(f"v_and_b32 v{67+2*X}, s44, v{i}")
            for X in order:
                r, i = vals[X]
                body.append(f"v_sub_f32 v{66+2*X}, v{r}, v{66+2*X}")
                body.append(f"v_sub_f32 v{67+2*X}, v{i}, v{67+2*X}")
            for X in order:
                body.append(f"v_perm_b32 v{frag(st,X,1)+e}, v{67+2*X}, v{66+2*X}, s45")
        if s > 0:
            body = interleave(body, mfmas((s - 1) & 1), start=4)
        for b in body: a(b)
    for m in mfmas(1): a(m)
    a.lines.append("; STAMP")
    a("s_mul_i32 s7, s6, 3072")
    a("v_lshlrev_b32 v9, 2, v2")
    a("v_add_u32 v9, s7, v9")
    for r in range(12):
        a(f"ds_write_b32 v9, v{16+r} offset:{8192 + r*256}")
    a("s_waitcnt lgkmcnt(0)")
    a("s_barrier")
    a.lines.append("; STAMP")
    a("s_lshr_b32 s8, s6, 2")
    a("s_and_b32 s9, s6, 3")
    a("s_mul_i32 s10, s8, 12288")
    a("s_lshl_b32 s11, s9, 8")
    a("s_add_u32 s10, s10, s11")
    a("v_lshlrev_b32 v9, 2, v2")
    a("v_add_u32 v9, s10, v9")
    for b in range(3):
        for w in range(4):
            a(f"ds_read_b32 v{28+4*b+w}, v9 offset:{8192 + w*3072 + b*1024}")
    a("v_lshlrev_b32 v10, 2, v4")
    a("v_add_u32 v10, s9, v10")
    bases('v10', 'v44', 'v45', 'v46', 'v11', 'v12')
    a("s_lshl_b32 s11, s8, 12")
    a("s_movk_i32 s12, 0x7f")
    a("s_movk_i32 s13, 0x800")
    for b in range(3):
        a(f"v_lshl_add_u32 v{44+b}, v3, 3, v{44+b}")
        a(f"v_cvt_f32_u32 v{48+b}, v{44+b}")
        a(f"v_lshrrev_b32 v{48+b}, 16, v{48+b}")
        a(f"v_subrev_u32 v{48+b}, 0x4280, v{48+b}")
        a(f"v_med3_i32 v{48+b}, v{48+b}, v{44+b}, s12")
        a(f"v_mov_b32 v52, 1000")
        a(f"v_cmp_ge_u32 vcc, s13, v{44+b}")
        a(f"v_cndmask_b32 v{48+b}, v52, v{48+b}, vcc")
        a(f"v_lshlrev_b32 v{48+b}, 2, v{48+b}")
        a(f"v_add_u32 v{48+b}, s11, v{48+b}")
    a("s_waitcnt lgkmcnt(0)")
    for b in range(3):
        a(f"v_add_f32 v{28+4*b}, v{28+4*b}, v{29+4*b}")
        a(f"v_add_f32 v{30+4*b}, v{30+4*b}, v{31+4*b}")
        a(f"v_add_f32 v{28+4*b}, v{28+4*b}, v{30+4*b}")
        a(f"ds_write_b32 v{48+b}, v{28+4*b} offset:32768")
    a("s_waitcnt lgkmcnt(0)")
    a("s_barrier")
    a.lines.append("; STAMP")
    a("v_and_b32 v9, 0xff, v0")
    a("v_lshlrev_b32 v10, 3, v9")
    a("v_sub_u32 v10, 0x7ff, v10")
    for e in range(8):
        a(f"v_subrev_u32 v{44+e}, {e}, v10")
        a(f"v_cvt_f32_u32 v{52+e}, v{44+e}")
        a(f"v_cvt_pk_bf16_f32 v{52+e}, v{52+e}, v{52+e}")
        a(f"v_and_b32 v{52+e}, 0xffff, v{52+e}")
        a(f"v_subrev_u32 v{52+e}, 0x4280, v{52+e}")
        a(f"v_med3_i32 v{52+e}, v{52+e}, v{44+e}, s12")
        a(f"v_lshlrev_b32 v{52+e}, 2, v{52+e}")
        a(f"v_add_u32 v{52+e}, s11, v{52+e}")
        a(f"ds_read_b32 v{28+e}, v{52+e} offset:32768")
    a("s_waitcnt lgkmcnt(0)")
    for k in range(4):
        a(f"v_cvt_pk_bf16_f32 v{60+k}, v{28+2*k}, v{29+2*k}")
        a(f"v_lshlrev_b32 v70, 16, v{60+k}")
        a(f"v_and_b32 v71, s44, v{60+k}")
        a(f"v_sub_f32 v70, v{28+2*k}, v70")
        a(f"v_sub_f32 v71, v{29+2*k}, v71")
        a(f"v_cvt_pk_bf16_f32 v{64+k}, v70, v71")
    a("s_add_u32 s14, s4, s8")
    a("s_lshl_b32 s14, s14, 12")
    a("v_lshlrev_b32 v9, 4, v9")
    a("v_add_u32 v9, s14, v9")
    add64(a, 34, 32, WS_RHI)
    add64(a, 36, 32, WS_RLO)
    a("global_store_dwordx4 v9, v[60:63], s[34:35]")
    a("global_store_dwordx4 v9, v[64:67], s[36:37]")
    a("s_endpgm")
    a.label("K1_LN")
    a.lines.append("; STAMP0")
    ST = 928; XOFF = 64 * ST
    a("s_sub_u32 s3, s2, 224")
    a("s_lshl_b32 s3, s3, 6")
    a("v_lshrrev_b32 v3, 3, v0")
    a("v_and_b32 v4, 7, v0")
    a("v_add_u32 v5, s3, v3")
    a("s_movk_i32 s7, 896")
    a("v_mul_lo_u32 v5, v5, s7")
    a("v_lshl_add_u32 v5, v4, 4, v5")
    a(f"s_movk_i32 s7, {ST}")
    a("v_mul_lo_u32 v6, v3, s7")
    a("v_lshl_add_u32 v6, v4, 4, v6")
    a("s_mov_b32 s44, 0xffff0000")
    a("s_waitcnt lgkmcnt(0)")
    for i in range(7):
        a(f"global_load_dwordx4 v[{16+4*i}:{19+4*i}], v5, s[16:17] offset:{128*i}")
    for i in range(7):
        a(f"s_waitcnt vmcnt({6-i})")
        a(f"ds_write_b128 v6, v[{16+4*i}:{19+4*i}] offset:{XOFF + 128*i}")
        for k in range(4):
            a(f"v_lshlrev_b32 v{48+8*i+2*k}, 16, v{16+4*i+k}")
            a(f"v_and_b32 v{49+8*i+2*k}, s44, v{16+4*i+k}")
    a.lines.append("; STAMP")
    a("v_add_f32 v8, v48, v49")
    a("v_add_f32 v9, v50, v51")
    for k in range(2, 28):
        a(f"v_add_f32 v{8+(k&1)}, v{8+(k&1)}, v{48+2*k}")
        a(f"v_add_f32 v{8+(k&1)}, v{8+(k&1)}, v{49+2*k}")
    a("v_add_f32 v8, v8, v9")
    def red8(r):
        a(f"v_add_f32_dpp {r}, {r}, {r} quad_perm:[1,0,3,2] row_mask:0xf bank_mask:0xf")
        a(f"v_add_f32_dpp {r}, {r}, {r} quad_perm:[2,3,0,1] row_mask:0xf bank_mask:0xf")
        a(f"v_add_f32_dpp {r}, {r}, {r} row_half_mirror row_mask:0xf bank_mask:0xf")
    red8('v8')
    a(f"s_mov_b32 s8, {f32bits(1.0/448)}")
    a("v_mul_f32 v8, s8, v8")
    a("v_mov_b32 v10, 0")
    a("v_mov_b32 v11, 0")
    for k in range(56):
        a(f"v_sub_f32 v{12+(k&1)}, v{48+k}, v8")
        a(f"v_fma_f32 v{10+(k&1)}, v{12+(k&1)}, v{12+(k&1)}, v{10+(k&1)}")
    a("v_add_f32 v10, v10, v11")
    red8('v10')
    a("v_mul_f32 v10, s8, v10")
    a("v_cvt_pk_bf16_f32 v11, v8, v10")
    a("v_lshlrev_b32 v8, 16, v11")
    a("v_and_b32 v10, s44, v11")
    a(f"v_add_f32 v10, {f32bits(1e-5)}, v10")
    a("v_cvt_pk_bf16_f32 v10, v10, v10")
    a("v_lshlrev_b32 v10, 16, v10")
    a("v_sqrt_f32 v10, v10")
    a("v_cvt_pk_bf16_f32 v10, v10, v10")
    a("v_lshlrev_b32 v10, 16, v10")
    a("v_rcp_f32 v10, v10")
    for i in range(7):
        for k in range(4):
            x0 = 48 + 8 * i + 2 * k; x1 = x0 + 1
            a(f"v_sub_f32 v{x0}, v{x0}, v8")
            a(f"v_sub_f32 v{x1}, v{x1}, v8")
            a(f"v_cvt_pk_bf16_f32 v12, v{x0}, v{x1}")
            a(f"v_lshlrev_b32 v{x0}, 16, v12")
            a(f"v_and_b32 v{x1}, s44, v12")
            a(f"v_mul_f32 v{x0}, v{x0}, v10")
            a(f"v_mul_f32 v{x1}, v{x1}, v10")
            a(f"v_cvt_pk_bf16_f32 v{16+4*i+k}, v{x0}, v{x1}")
        a(f"ds_write_b128 v6, v[{16+4*i}:{19+4*i}] offset:{128*i}")
    a("s_waitcnt lgkmcnt(0)")
    a("s_barrier")
    a.lines.append("; STAMP")
    a("v_lshrrev_b32 v3, 4, v2")
    a("v_bfe_u32 v4, v2, 2, 2")
    a("v_and_b32 v5, 3, v2")
    a("v_lshl_add_u32 v6, v3, 3, v4")
    a("v_mul_lo_u32 v6, v6, s7")
    a("v_lshl_add_u32 v6, v5, 3, v6")
    a("v_and_b32 v7, 15, v2")
    a("v_lshlrev_b32 v7, 12, v7")
    a("v_lshl_add_u32 v7, v3, 4, v7")
    a("s_lshl_b32 s9, s3, 1")
    a("v_add_u32 v7, s9, v7")
    a("s_mul_i32 s10, s6, 7")
    for k in range(7):
        a(f"s_add_u32 s11, s10, {k}")
        a("s_cmp_ge_u32 s11, 28")
        a("s_cselect_b32 s12, 28, 0")
        a(f"s_cselect_b32 s13, {XOFF}, 0")
        a(f"s_cselect_b32 s14, {hex(WS_XT)}, {hex(WS_UT)}")
        a("s_sub_u32 s11, s11, s12")
        a("s_lshl_b32 s12, s11, 5")
        a("s_add_u32 s12, s12, s13")
        a("v_add_u32 v8, s12, v6")
        b = 16 + 8 * (k & 1)
        for hh in range(2):
            for x in range(2):
                a(f"ds_read_b64_tr_b16 v[{b+4*hh+2*x}:{b+4*hh+2*x+1}], v8 offset:{(32*hh+4*x)*ST}")
        a("s_lshl_b32 s11, s11, 16")
        a("s_add_u32 s11, s11, s14")
        a("v_add_u32 v9, s11, v7")
        a("s_waitcnt lgkmcnt(0)")
        a(f"global_store_dwordx4 v9, v[{b}:{b+3}], s[32:33]")
        a(f"global_store_dwordx4 v9, v[{b+4}:{b+7}], s[32:33] offset:64")
    a.label("K1_END")
    a("s_endpgm")
    return a.finalize(), 144, 2 * 64 * 928

KERNELS = []
def build(which):
    hdr = open('cdna_kernels/' + NAME + '.s.ref').read().split('; Override')[0]
    launches = ''; text = ''; desc = ''
    for (nm, fn, grid, block) in which:
        body, vg, lds = fn()
        launches += f"; @launch kernel={nm} grid=({grid},1,1) block=({block},1,1) lds={lds}\n"
        text += kernel_header(nm) + body
        desc += kernel_desc(nm, vg)
    s = hdr + launches + '.amdgcn_target "amdgcn-amd-amdhsa--gfx950"\n.text\n' + text + 'CODE_END:\n' + '.section .rodata,"a"\n' + desc
    return s

if __name__ == '__main__':
    ks = [('k1_kernel', gen_k1, 256, 512)]
    open('cdna_kernels/' + NAME + '.s', 'w').write(build(ks))
```

```python
from gen import *

OS = [0, 9, 5, 14, 6, 11, 0, 12]
def gen_k2():
    a = Asm()
    CH = 46080; UB = 9216; CS = 4608
    a("s_cmp_ge_u32 s2, 256")
    a("s_cbranch_scc1 K2_END")
    a("s_load_dwordx2 s[32:33], s[0:1], 112")
    a("s_load_dwordx2 s[30:31], s[0:1], 64")
    a("s_load_dwordx2 s[28:29], s[0:1], 80")
    a("v_lshrrev_b32 v1, 6, v0")
    a("v_readfirstlane_b32 s6, v1")
    a("v_and_b32 v2, 63, v0")
    a("s_cmp_ge_u32 s2, 224")
    a("s_cbranch_scc1 K2_TR")
    a("s_lshr_b32 s8, s6, 2")
    a("s_and_b32 s9, s6, 3")
    a("s_lshl_b32 s4, s2, 1")
    a("s_add_u32 s4, s4, s8")
    a("s_lshl_b32 s5, s4, 12")
    a(f"s_mul_i32 s10, s8, {CH}")
    a("v_and_b32 v3, 0xff, v0")
    a("v_lshlrev_b32 v4, 4, v3")
    a("v_subrev_u32 v5, 32, v4")
    a("s_waitcnt lgkmcnt(0)")
    a("s_add_u32 s12, s32, s5")
    a("s_addc_u32 s13, s33, 0")
    a("s_mov_b32 s14, 4096")
    a("s_mov_b32 s15, 0x00020000")
    a("buffer_load_dwordx4 v[16:19], v5, s[12:15], 0 offen")
    a("buffer_load_dwordx4 v[20:23], v5, s[12:15], 0 offen offset:16")
    add64(a, 34, 12, WS_RHI)
    add64(a, 36, 12, WS_RLO)
    add64(a, 38, 12, WS_XT)
    add64(a, 40, 12, WS_HT)
    a("global_load_dwordx4 v[44:47], v4, s[34:35]")
    a("global_load_dwordx4 v[48:51], v4, s[36:37]")
    a("buffer_load_dwordx4 v[52:55], v4, s[12:15], 0 offen offset:4064")
    a("buffer_load_dwordx4 v[56:59], v4, s[12:15], 0 offen offset:4080")
    a("buffer_load_dwordx4 v[192:195], v4, s[12:15], 0 offen")
    a("global_load_dwordx4 v[196:199], v4, s[38:39]")
    a("s_lshl_b32 s11, s4, 1")
    a("v_mov_b32 v6, s11")
    a("global_load_ushort v200, v6, s[30:31]")
    a("v_add_u32 v6, s10, v4")
    def copies(c0, off):
        for k in range(6): a(f"v_mov_b32 v{24+k}, v{c0+k+1}")
        for k in range(7): a(f"v_alignbyte_b32 v{30+k}, v{c0+k+1}, v{c0+k}, 2")
        for k in range(6): a(f"v_alignbyte_b32 v{38+k}, v{c0+k+2}, v{c0+k+1}, 2")
        src = {0: c0, 2: 24, 4: c0 + 2, 6: 26, 1: 30, 5: 32, 3: 38, 7: 40}
        for s in range(8):
            a(f"ds_write_b128 v6, v[{src[s]}:{src[s]+3}] offset:{UB + s*CS + OS[s]*16 + off}")
    a("s_waitcnt vmcnt(7)")
    a.lines.append("; STAMP")
    copies(16, 0)
    a("s_waitcnt vmcnt(5)")
    a("ds_write_b128 v6, v[44:47]")
    a("ds_write_b128 v6, v[48:51] offset:4608")
    a("s_waitcnt vmcnt(3)")
    a("v_cmp_gt_u32 vcc, 2, v3")
    a("s_and_saveexec_b64 s[42:43], vcc")
    copies(52, 4096)
    a("s_mov_b64 exec, s[42:43]")
    a("v_mov_b32 v24, 0"); a("v_mov_b32 v25, 0"); a("v_mov_b32 v26, 0"); a("v_mov_b32 v27, 0")
    a("v_cmp_gt_u32 vcc, 32, v3")
    a("s_and_saveexec_b64 s[42:43], vcc")
    a("ds_write_b128 v6, v[24:27] offset:4096")
    a("ds_write_b128 v6, v[24:27] offset:8704")
    a("s_mov_b64 exec, s[42:43]")
    a("v_and_b32 v7, 15, v2")
    a("v_lshrrev_b32 v8, 4, v2")
    a("v_lshlrev_b32 v9, 5, v7")
    a("v_lshlrev_b32 v10, 4, v8")
    a("v_sub_u32 v9, v10, v9")
    a("s_lshl_b32 s11, s9, 6")
    a("s_sub_u32 s16, s10, s11")
    a("s_add_u32 s17, s16, 928")
    a("v_add_u32 v9, s17, v9")
    a("v_add_u32 v11, 1, v7")
    a("v_and_b32 v12, 7, v11")
    a("v_lshrrev_b32 v13, 3, v11")
    a("v_add_u32 v13, v13, v8")
    a("v_lshlrev_b32 v14, 2, v12")
    a("s_mov_b32 s18, 0xc0b6e590")
    a("v_lshrrev_b32 v14, v14, s18")
    a("v_and_b32 v14, 15, v14")
    a("v_add_u32 v13, v13, v14")
    a("v_lshlrev_b32 v13, 4, v13")
    a(f"s_movk_i32 s18, {CS}")
    a("v_mul_lo_u32 v12, v12, s18")
    a("v_add_u32 v13, v13, v12")
    a(f"s_add_u32 s17, s16, {UB + 448}")
    a("v_add_u32 v10, s17, v13")
    for r in range(32): a(f"v_mov_b32 v{160+r}, 0")
    a("s_waitcnt lgkmcnt(0)")
    a("s_barrier")
    a.lines.append("; STAMP")
    for gi in range(2):
        if gi == 1:
            a("v_subrev_u32 v9, 0x100, v9")
            a("v_subrev_u32 v10, 0x100, v10")
        for k in range(8):
            a(f"ds_read_b128 v[{128+4*k}:{131+4*k}], v10 offset:{512*k}")
            a(f"ds_read_b128 v[{64+8*k}:{67+8*k}], v9 offset:{512*(7-k)}")
            a(f"ds_read_b128 v[{68+8*k}:{71+8*k}], v9 offset:{512*(7-k)+4608}")
        for k in range(8):
            a(f"s_waitcnt lgkmcnt({min(15, 24-3*(k+1))})")
            pairs = [(k, dl) for dl in range(k + 1)] + [(t, k) for t in range(k)]
            for (t, dl) in pairs:
                if t + dl > 7: continue
                seg = t + dl
                acc = f"v[{160+4*seg}:{163+4*seg}]"
                a(f"v_mfma_f32_16x16x32_bf16 {acc}, v[{64+8*t}:{67+8*t}], v[{128+4*dl}:{131+4*dl}], {acc}")
                a(f"v_mfma_f32_16x16x32_bf16 {acc}, v[{68+8*t}:{71+8*t}], v[{128+4*dl}:{131+4*dl}], {acc}")
    a.lines.append("; STAMP")
    a("s_barrier")
    a.lines.append("; STAMP")
    a("s_lshl_b32 s11, s6, 13")
    a("v_lshlrev_b32 v9, 2, v2")
    a("v_add_u32 v9, s11, v9")
    for r in range(32):
        a(f"ds_write_b32 v9, v{160+r} offset:{256*r}")
    a("s_waitcnt lgkmcnt(0)")
    a("s_barrier")
    a.lines.append("; STAMP")
    a("v_lshrrev_b32 v9, 5, v3")
    a("v_bfe_u32 v10, v3, 1, 4")
    a("v_and_b32 v11, 3, v10")
    a("v_lshl_add_u32 v9, v9, 2, v11")
    a("v_lshlrev_b32 v9, 8, v9")
    a("v_lshrrev_b32 v10, 2, v10")
    a("v_lshl_add_u32 v9, v10, 6, v9")
    a("v_and_b32 v11, 1, v3")
    a("v_lshl_add_u32 v9, v11, 5, v9")
    a("s_lshl_b32 s11, s8, 15")
    a("v_add_u32 v9, s11, v9")
    for w in range(4):
        a(f"ds_read_b128 v[{64+8*w}:{67+8*w}], v9 offset:{8192*w}")
        a(f"ds_read_b128 v[{68+8*w}:{71+8*w}], v9 offset:{8192*w+16}")
    a("s_mov_b32 s44, 0xffff0000")
    a("s_waitcnt vmcnt(0)")
    a("v_lshlrev_b32 v200, 16, v200")
    a("s_waitcnt lgkmcnt(0)")
    for e in range(8):
        a(f"v_add_f32 v{64+e}, v{64+e}, v{72+e}")
        a(f"v_add_f32 v{80+e}, v{80+e}, v{88+e}")
        a(f"v_add_f32 v{64+e}, v{64+e}, v{80+e}")
    for k in range(4):
        a(f"v_cvt_pk_bf16_f32 v24, v{64+2*k}, v{65+2*k}")
        a(f"v_lshlrev_b32 v25, 16, v{192+k}")
        a(f"v_and_b32 v26, s44, v{192+k}")
        a(f"v_mul_f32 v25, v25, v200")
        a(f"v_mul_f32 v26, v26, v200")
        a(f"v_cvt_pk_bf16_f32 v27, v25, v26")
        a(f"v_lshlrev_b32 v25, 16, v24")
        a(f"v_and_b32 v26, s44, v24")
        a(f"v_lshlrev_b32 v28, 16, v27")
        a(f"v_and_b32 v29, s44, v27")
        a(f"v_add_f32 v25, v25, v28")
        a(f"v_add_f32 v26, v26, v29")
        a(f"v_cvt_pk_bf16_f32 v24, v25, v26")
        a(f"v_lshlrev_b32 v25, 16, v24")
        a(f"v_and_b32 v26, s44, v24")
        a(f"v_lshlrev_b32 v28, 16, v{196+k}")
        a(f"v_and_b32 v29, s44, v{196+k}")
        a(f"v_add_f32 v25, v25, v28")
        a(f"v_add_f32 v26, v26, v29")
        a(f"v_cvt_pk_bf16_f32 v{32+k}, v25, v26")
    a("global_store_dwordx4 v4, v[32:35], s[40:41]")
    a("s_endpgm")
    a.label("K2_TR")
    a("s_sub_u32 s3, s2, 224")
    a("s_lshl_b32 s3, s3, 3")
    a("s_add_u32 s3, s3, s6")
    a("s_mul_i32 s7, s6, 5120")
    a("v_lshrrev_b32 v3, 3, v2")
    a("v_and_b32 v4, 7, v2")
    a("s_movk_i32 s8, 3584")
    a("v_mul_lo_u32 v5, v3, s8")
    a("v_lshl_add_u32 v5, v4, 4, v5")
    a("s_movk_i32 s8, 160")
    a("v_mul_lo_u32 v6, v3, s8")
    a("v_lshl_add_u32 v6, v4, 4, v6")
    a("v_add_u32 v6, s7, v6")
    a("v_lshrrev_b32 v7, 4, v2")
    a("v_bfe_u32 v8, v2, 2, 2")
    a("v_lshl_add_u32 v7, v7, 2, v8")
    a("v_mul_lo_u32 v7, v7, s8")
    a("v_and_b32 v8, 3, v2")
    a("v_lshl_add_u32 v7, v8, 4, v7")
    a("v_add_u32 v7, s7, v7")
    a("v_lshlrev_b32 v8, 4, v2")
    a("s_waitcnt lgkmcnt(0)")
    add64(a, 34, 32, WS_W1F)
    a.label("K2_TRL")
    a("s_cmp_ge_u32 s3, 392")
    a("s_cbranch_scc1 K2_END")
    a("s_mul_i32 s9, s3, 9363")
    a("s_lshr_b32 s9, s9, 18")
    a("s_mul_i32 s10, s9, 28")
    a("s_sub_u32 s10, s3, s10")
    a("s_mul_i32 s11, s9, 114688")
    a("s_lshl_b32 s12, s10, 7")
    a("s_add_u32 s11, s11, s12")
    a("v_add_u32 v9, s11, v5")
    for i in range(4):
        if i: a(f"v_add_u32 v9, {8*3584}, v9")
        a(f"global_load_dwordx4 v[{16+4*i}:{19+4*i}], v9, s[28:29]")
    for i in range(4):
        a(f"s_waitcnt vmcnt({3-i})")
        a(f"ds_write_b128 v6, v[{16+4*i}:{19+4*i}] offset:{8*160*i}")
    a("s_waitcnt lgkmcnt(0)")
    for fgl in range(2):
        for T in range(2):
            b = 32 + 8 * fgl + 4 * T
            a(f"ds_read_b64_tr_b16 v[{b}:{b+1}], v7 offset:{64*fgl+8*T}")
            a(f"ds_read_b64_tr_b16 v[{b+2}:{b+3}], v7 offset:{64*fgl+8*T+16*160}")
    a("s_mul_i32 s11, s10, 57344")
    a("s_lshl_b32 s12, s9, 11")
    a("s_add_u32 s11, s11, s12")
    a("v_add_u32 v9, s11, v8")
    a("v_add_u32 v10, 28672, v9")
    a("s_waitcnt lgkmcnt(0)")
    a("global_store_dwordx4 v9, v[32:35], s[34:35]")
    a("global_store_dwordx4 v9, v[36:39], s[34:35] offset:1024")
    a("global_store_dwordx4 v10, v[40:43], s[34:35]")
    a("global_store_dwordx4 v10, v[44:47], s[34:35] offset:1024")
    a("s_add_u32 s3, s3, 256")
    a("s_branch K2_TRL")
    a.label("K2_END")
    a("s_endpgm")
    return a.finalize(), 208, 2 * CH

if __name__ == '__main__':
    ks = [('k1_kernel', gen_k1, 256, 512), ('k2_kernel', gen_k2, 256, 512)]
    open('cdna_kernels/' + NAME + '.s', 'w').write(build(ks))
```

```python
from gen2 import *

def tile_ids(a):
    a("s_and_b32 s3, s2, 7")
    a("s_lshl_b32 s3, s3, 2")
    a("s_bfe_u32 s4, s2, 0x20003")
    a("s_add_u32 s3, s3, s4")
    a("s_lshr_b32 s4, s2, 5")

def gen_k3():
    a = Asm()
    PART = 0; FIN = 4096; AT = 4608
    a("s_cmp_ge_u32 s2, 256")
    a("s_cbranch_scc1 K3_END")
    a("s_load_dwordx2 s[32:33], s[0:1], 112")
    a("s_load_dwordx2 s[28:29], s[0:1], 88")
    a("v_lshrrev_b32 v1, 6, v0")
    a("v_readfirstlane_b32 s6, v1")
    a("v_and_b32 v2, 63, v0")
    a("s_cmp_ge_u32 s2, 224")
    a("s_cbranch_scc1 K3_TR")
    tile_ids(a)
    a("s_lshl_b32 s5, s3, 7")
    a("v_and_b32 v3, 7, v0")
    a("v_lshrrev_b32 v4, 3, v0")
    a("v_lshlrev_b32 v5, 4, v3")
    a("v_add_u32 v5, s5, v5")
    a("v_lshl_add_u32 v6, v4, 12, v5")
    a("v_lshlrev_b32 v7, 1, v0")
    a("v_add_u32 v7, s5, v7")
    a("s_waitcnt lgkmcnt(0)")
    a(f"s_add_u32 s12, s32, {hex(WS_HT)}")
    a("s_addc_u32 s13, s33, 0")
    a("s_mov_b32 s14, 0x1c0000")
    a("s_mov_b32 s15, 0x00020000")
    a(f"s_add_u32 s16, s32, {hex(WS_W1F)}")
    a("s_addc_u32 s17, s33, 0")
    a("s_mov_b32 s18, 0x188000")
    a("s_mov_b32 s19, 0x00020000")
    for i in range(7):
        a(f"s_mov_b32 s{20+i}, {hex(i*262144)}")
    for i in range(7):
        a(f"buffer_load_dwordx4 v[{16+4*i}:{19+4*i}], v6, s[12:15], s{20+i} offen")
    a("buffer_load_dwordx4 v[44:47], v5, s[12:15], 0 offen")
    a("buffer_load_ushort v8, v7, s[12:15], 0 offen")
    a("s_lshl_b32 s7, s4, 3")
    a("s_add_u32 s7, s7, s6")
    a("s_mul_i32 s8, s7, 28672")
    a("v_lshlrev_b32 v9, 4, v2")
    a("v_add_u32 v10, s8, v9")
    for i in range(7):
        a(f"s_mov_b32 s{34+i}, {i*4096}")
    wl = [f"buffer_load_dwordx4 v[{128+4*k}:{131+4*k}], v10, s[16:19], s{34+k//4} offen offset:{(k%4)*1024}" for k in range(28)]
    a("s_mov_b32 s44, 0xffff0000")
    a("s_waitcnt vmcnt(1)")
    a.lines.append("; STAMP")
    for k in range(4):
        a(f"v_lshlrev_b32 v{104+2*k}, 16, v{44+k}")
        a(f"v_and_b32 v{105+2*k}, s44, v{44+k}")
    for r in range(16): a(f"v_mov_b32 v{112+r}, 0")
    for i in range(7):
        for k in range(4):
            a(f"v_lshlrev_b32 v{48+8*i+2*k}, 16, v{16+4*i+k}")
            a(f"v_and_b32 v{49+8*i+2*k}, s44, v{16+4*i+k}")
        for r in range(8):
            a(f"v_sub_f32 v{12+(r&3)}, v{48+8*i+r}, v{104+r}")
            a(f"v_add_f32 v{112+r}, v{112+r}, v{12+(r&3)}")
            a(f"v_fma_f32 v{120+r}, v{12+(r&3)}, v{12+(r&3)}, v{120+r}")
        a(wl[2*i]); a(wl[2*i+1])
    for k in range(8):
        a(f"v_permlane32_swap_b32 v{112+k}, v{120+k}")
    for k in range(8):
        a(f"v_add_f32 v{112+k}, v{112+k}, v{120+k}")
    for k in range(4):
        a(f"v_permlane16_swap_b32 v{112+k}, v{116+k}")
    for k in range(4):
        a(f"v_add_f32 v{112+k}, v{112+k}, v{116+k}")
    for k in range(4):
        a(f"v_add_f32_dpp v{112+k}, v{112+k}, v{112+k} row_ror:8 row_mask:0xf bank_mask:0xf")
    a("v_lshrrev_b32 v12, 5, v2")
    a("v_bfe_u32 v13, v2, 4, 1")
    a("v_lshlrev_b32 v14, 5, v3")
    a("v_lshl_add_u32 v14, v13, 4, v14")
    a("v_lshl_add_u32 v14, v12, 8, v14")
    a("s_lshl_b32 s9, s6, 9")
    a("v_add_u32 v14, s9, v14")
    a(f"ds_write_b128 v14, v[112:115] offset:{PART}")
    a("s_waitcnt lgkmcnt(0)")
    a("s_barrier")
    a.lines.append("; STAMP")
    a("s_cmp_lg_u32 s6, 0")
    a("s_cbranch_scc1 K3_SKIP")
    a("v_lshlrev_b32 v12, 2, v2")
    for w in range(8):
        a(f"ds_read_b32 v{112+w}, v12 offset:{PART + 512*w}")
        a(f"ds_read_b32 v{120+w}, v12 offset:{PART + 512*w + 256}")
    a("s_waitcnt lgkmcnt(0)")
    for st in (112, 120):
        a(f"v_add_f32 v{st}, v{st}, v{st+1}")
        a(f"v_add_f32 v{st+2}, v{st+2}, v{st+3}")
        a(f"v_add_f32 v{st+4}, v{st+4}, v{st+5}")
        a(f"v_add_f32 v{st+6}, v{st+6}, v{st+7}")
        a(f"v_add_f32 v{st}, v{st}, v{st+2}")
        a(f"v_add_f32 v{st+4}, v{st+4}, v{st+6}")
        a(f"v_add_f32 v{st}, v{st}, v{st+4}")
    a(f"s_mov_b32 s9, {f32bits(1.0/448)}")
    a("v_mul_f32 v112, s9, v112")
    a("v_mul_f32 v120, s9, v120")
    a("v_fma_f32 v120, -v112, v112, v120")
    a("v_max_f32 v120, 0, v120")
    a("s_waitcnt vmcnt(14)")
    a("v_lshlrev_b32 v8, 16, v8")
    a("v_add_f32 v112, v8, v112")
    a("v_cvt_pk_bf16_f32 v13, v112, v120")
    a("v_lshlrev_b32 v112, 16, v13")
    a("v_and_b32 v120, s44, v13")
    a(f"v_add_f32 v120, {f32bits(1e-5)}, v120")
    a("v_cvt_pk_bf16_f32 v120, v120, v120")
    a("v_lshlrev_b32 v120, 16, v120")
    a("v_sqrt_f32 v120, v120")
    a("v_cvt_pk_bf16_f32 v120, v120, v120")
    a("v_lshlrev_b32 v120, 16, v120")
    a("v_rcp_f32 v120, v120")
    a(f"ds_write_b32 v12, v112 offset:{FIN}")
    a(f"ds_write_b32 v12, v120 offset:{FIN+256}")
    a("s_waitcnt lgkmcnt(0)")
    a.label("K3_SKIP")
    a("s_barrier")
    a.lines.append("; STAMP")
    a("v_lshlrev_b32 v12, 5, v3")
    a(f"ds_read_b128 v[104:107], v12 offset:{FIN}")
    a(f"ds_read_b128 v[108:111], v12 offset:{FIN+16}")
    a(f"ds_read_b128 v[112:115], v12 offset:{FIN+256}")
    a(f"ds_read_b128 v[116:119], v12 offset:{FIN+272}")
    a("s_movk_i32 s9, 160")
    a("v_mul_lo_u32 v13, v4, s9")
    a("v_lshl_add_u32 v13, v3, 4, v13")
    a(f"v_add_u32 v13, {AT}, v13")
    a("s_waitcnt lgkmcnt(0)")
    for i in range(7):
        for k in range(4):
            x0 = 48 + 8 * i + 2 * k; x1 = x0 + 1
            a(f"v_sub_f32 v{x0}, v{x0}, v{104+2*k}")
            a(f"v_sub_f32 v{x1}, v{x1}, v{105+2*k}")
            a(f"v_cvt_pk_bf16_f32 v{12+2*(k&1)}, v{x0}, v{x1}")
            a(f"v_lshlrev_b32 v{x0}, 16, v{12+2*(k&1)}")
            a(f"v_and_b32 v{x1}, s44, v{12+2*(k&1)}")
            a(f"v_mul_f32 v{x0}, v{x0}, v{112+2*k}")
            a(f"v_mul_f32 v{x1}, v{x1}, v{113+2*k}")
            a(f"v_cvt_pk_bf16_f32 v{16+4*i+k}, v{x0}, v{x1}")
        a(f"ds_write_b128 v13, v[{16+4*i}:{19+4*i}] offset:{64*160*i}")
        a(wl[14+2*i]); a(wl[15+2*i])
    a("v_lshrrev_b32 v4, 4, v2")
    a("v_bfe_u32 v5, v2, 2, 2")
    a("v_lshl_add_u32 v4, v4, 2, v5")
    a("v_mul_lo_u32 v4, v4, s9")
    a("v_and_b32 v5, 3, v2")
    a("v_lshl_add_u32 v4, v5, 3, v4")
    a(f"v_add_u32 v4, {AT}, v4")
    a("v_add_u32 v5, 35840, v4")
    for r in range(32): a(f"v_mov_b32 v{96+r}, 0")
    a("s_waitcnt lgkmcnt(0)")
    a("s_barrier")
    a.lines.append("; STAMP")
    def trreads(s):
        b = 16 + 16 * (s & 1)
        base = 'v4' if s < 7 else 'v5'; so = (s % 7) * 5120
        out = []
        for mt in range(4):
            out.append(f"ds_read_b64_tr_b16 v[{b+4*mt}:{b+4*mt+1}], {base} offset:{so+32*mt}")
            out.append(f"ds_read_b64_tr_b16 v[{b+4*mt+2}:{b+4*mt+3}], {base} offset:{so+32*mt+2560}")
        return out
    for x in trreads(0): a(x)
    for s in range(14):
        if s < 13:
            for x in trreads(s + 1): a(x)
            a(f"s_waitcnt vmcnt({26-2*s}) lgkmcnt(8)")
        else:
            a(f"s_waitcnt vmcnt(0) lgkmcnt(0)")
        b = 16 + 16 * (s & 1)
        for mt in range(4):
            for T in range(2):
                acc = f"v[{96+16*T+4*mt}:{99+16*T+4*mt}]"
                w = 128 + 8 * s + 4 * T
                a(f"v_mfma_f32_16x16x32_bf16 {acc}, v[{w}:{w+3}], v[{b+4*mt}:{b+4*mt+3}], {acc}")
    a.lines.append("; STAMP")
    a("s_mul_i32 s8, s3, 229376")
    a("s_lshl_b32 s9, s7, 10")
    a("s_add_u32 s8, s8, s9")
    a("v_add_u32 v10, s8, v9")
    add64(a, 34, 32, WS_H1F)
    for mt in range(4):
        for T in range(2):
            for r in range(4):
                a(f"v_max_f32 v{96+16*T+4*mt+r}, 0, v{96+16*T+4*mt+r}")
        o = 48 + 4 * mt
        a(f"v_cvt_pk_bf16_f32 v{o}, v{96+4*mt}, v{97+4*mt}")
        a(f"v_cvt_pk_bf16_f32 v{o+1}, v{98+4*mt}, v{99+4*mt}")
        a(f"v_cvt_pk_bf16_f32 v{o+2}, v{112+4*mt}, v{113+4*mt}")
        a(f"v_cvt_pk_bf16_f32 v{o+3}, v{114+4*mt}, v{115+4*mt}")
        if mt: a(f"v_add_u32 v10, 57344, v10")
        a(f"global_store_dwordx4 v10, v[{o}:{o+3}], s[34:35]")
    a("s_endpgm")
    a.label("K3_TR")
    a("s_sub_u32 s3, s2, 224")
    a("s_lshl_b32 s3, s3, 3")
    a("s_add_u32 s3, s3, s6")
    a("s_mul_i32 s7, s6, 5120")
    a("v_lshrrev_b32 v3, 3, v2")
    a("v_and_b32 v4, 7, v2")
    a("s_movk_i32 s8, 896")
    a("v_mul_lo_u32 v5, v3, s8")
    a("v_lshl_add_u32 v5, v4, 4, v5")
    a("s_movk_i32 s8, 160")
    a("v_mul_lo_u32 v6, v3, s8")
    a("v_lshl_add_u32 v6, v4, 4, v6")
    a("v_add_u32 v6, s7, v6")
    a("v_lshrrev_b32 v7, 4, v2")
    a("v_bfe_u32 v8, v2, 2, 2")
    a("v_lshl_add_u32 v7, v7, 3, v8")
    a("v_mul_lo_u32 v7, v7, s8")
    a("v_and_b32 v8, 3, v2")
    a("v_lshl_add_u32 v7, v8, 3, v7")
    a("v_add_u32 v7, s7, v7")
    a("v_lshlrev_b32 v8, 4, v2")
    a("s_waitcnt lgkmcnt(0)")
    add64(a, 34, 32, WS_W2F)
    a.label("K3_TRL")
    a("s_cmp_ge_u32 s3, 392")
    a("s_cbranch_scc1 K3_END")
    a("s_mul_i32 s9, s3, 9363")
    a("s_lshr_b32 s9, s9, 16")
    a("s_mul_i32 s10, s9, 7")
    a("s_sub_u32 s10, s3, s10")
    a("s_mul_i32 s11, s9, 28672")
    a("s_lshl_b32 s12, s10, 7")
    a("s_add_u32 s11, s11, s12")
    a("v_add_u32 v9, s11, v5")
    for i in range(4):
        if i: a(f"v_add_u32 v9, {8*896}, v9")
        a(f"global_load_dwordx4 v[{16+4*i}:{19+4*i}], v9, s[28:29]")
    for i in range(4):
        a(f"s_waitcnt vmcnt({3-i})")
        a(f"ds_write_b128 v6, v[{16+4*i}:{19+4*i}] offset:{8*160*i}")
    a("s_waitcnt lgkmcnt(0)")
    for T in range(4):
        b = 32 + 4 * T
        a(f"ds_read_b64_tr_b16 v[{b}:{b+1}], v7 offset:{32*T}")
        a(f"ds_read_b64_tr_b16 v[{b+2}:{b+3}], v7 offset:{32*T+4*160}")
    a("s_mul_i32 s11, s10, 229376")
    a("s_lshl_b32 s12, s9, 12")
    a("s_add_u32 s11, s11, s12")
    a("v_add_u32 v9, s11, v8")
    a("s_waitcnt lgkmcnt(0)")
    for T in range(4):
        a(f"global_store_dwordx4 v9, v[{32+4*T}:{35+4*T}], s[34:35] offset:{1024*T}")
    a("s_add_u32 s3, s3, 256")
    a("s_branch K3_TRL")
    a.label("K3_END")
    a("s_endpgm")
    return a.finalize(), 240, 76288

def gen_k4():
    a = Asm()
    RS = 272; WSZ = 64 * RS
    a("s_cmp_ge_u32 s2, 224")
    a("s_cbranch_scc1 K4_END")
    a("s_load_dwordx2 s[32:33], s[0:1], 112")
    a("s_load_dwordx2 s[30:31], s[0:1], 96")
    a("v_lshrrev_b32 v1, 6, v0")
    a("v_readfirstlane_b32 s6, v1")
    a("v_and_b32 v2, 63, v0")
    tile_ids(a)
    a("v_lshlrev_b32 v9, 4, v2")
    a("s_waitcnt lgkmcnt(0)")
    a(f"s_add_u32 s12, s32, {hex(WS_H1F)}")
    a("s_addc_u32 s13, s33, 0")
    a("s_mov_b32 s14, 0x700000")
    a("s_mov_b32 s15, 0x00020000")
    a(f"s_add_u32 s16, s32, {hex(WS_W2F)}")
    a("s_addc_u32 s17, s33, 0")
    a("s_mov_b32 s18, 0x188000")
    a("s_mov_b32 s19, 0x00020000")
    a(f"s_add_u32 s20, s32, {hex(WS_HT)}")
    a("s_addc_u32 s21, s33, 0")
    a("s_mov_b32 s22, 0x1c0000")
    a("s_mov_b32 s23, 0x00020000")
    a("s_mul_i32 s8, s3, 229376")
    a("s_mul_i32 s9, s6, 7168")
    a("s_add_u32 s8, s8, s9")
    a("v_add_u32 v10, s8, v9")
    a("s_mul_i32 s8, s4, 229376")
    a("s_mul_i32 s9, s6, 28672")
    a("s_add_u32 s8, s8, s9")
    a("v_add_u32 v11, s8, v9")
    for mt in range(4):
        a(f"s_mov_b32 s{34+mt}, {mt*57344}")
        a(f"s_mov_b32 s{38+mt}, {mt*57344+4096}")
    for k in range(8):
        a(f"s_mov_b32 s{44+k}, {k*4096}")
    NB = 5
    def loads(ks):
        b = 80 + 32 * (ks % NB)
        out = []
        for mt in range(4):
            so = 34 + mt if ks < 4 else 38 + mt
            out.append(f"buffer_load_dwordx4 v[{b+4*mt}:{b+4*mt+3}], v10, s[12:15], s{so} offen offset:{(ks%4)*1024}")
        for T in range(4):
            out.append(f"buffer_load_dwordx4 v[{b+16+4*T}:{b+19+4*T}], v11, s[16:19], s{44+ks} offen offset:{T*1024}")
        return out
    for ks in range(NB):
        for x in loads(ks): a(x)
    a("v_lshrrev_b32 v3, 3, v0")
    a("v_and_b32 v4, 7, v0")
    a("s_lshl_b32 s8, s4, 18")
    a("s_lshl_b32 s9, s3, 7")
    a("s_add_u32 s8, s8, s9")
    a("v_lshlrev_b32 v5, 15, v4")
    a("v_lshl_add_u32 v5, v3, 1, v5")
    a("v_add_u32 v5, s8, v5")
    for e in range(8):
        a(f"buffer_load_ushort v{240+e}, v5, s[20:23], s{44+e} offen")
    for r in range(64): a(f"v_mov_b32 v{16+r}, 0")
    issued = 48
    done_order = []
    for ks in range(7):
        if ks < NB:
            pos = 8 * (ks + 1)
        else:
            pos = 48 + 8 * (ks - NB + 1)
        a(f"s_waitcnt vmcnt({issued - pos})")
        if ks in (0, 4): a.lines.append("; STAMP")
        b = 80 + 32 * (ks % NB)
        for T in range(4):
            for mt in range(4):
                acc = f"v[{16+16*T+4*mt}:{19+16*T+4*mt}]"
                a(f"v_mfma_f32_16x16x32_bf16 {acc}, v[{b+16+4*T}:{b+19+4*T}], v[{b+4*mt}:{b+4*mt+3}], {acc}")
        if ks + NB < 7:
            for x in loads(ks + NB): a(x)
            issued += 8
    a.lines.append("; STAMP")
    a("v_and_b32 v6, 15, v2")
    a("v_lshrrev_b32 v7, 4, v2")
    a(f"s_movk_i32 s8, {RS}")
    a("v_mul_lo_u32 v6, v6, s8")
    a("v_lshl_add_u32 v6, v7, 4, v6")
    a(f"s_mul_i32 s9, s6, {WSZ}")
    a("v_add_u32 v6, s9, v6")
    for T in range(4):
        for mt in range(4):
            a(f"ds_write_b128 v6, v[{16+16*T+4*mt}:{19+16*T+4*mt}] offset:{mt*16*RS + 64*T}")
    a("s_waitcnt lgkmcnt(0)")
    a("s_barrier")
    a.lines.append("; STAMP")
    a("v_mul_lo_u32 v6, v3, s8")
    a("v_lshl_add_u32 v6, v4, 5, v6")
    a(f"v_add_u32 v7, {4*WSZ}, v6")
    for w in range(8):
        base = 'v6' if w < 4 else 'v7'
        a(f"ds_read_b128 v[{80+8*w}:{83+8*w}], {base} offset:{(w%4)*WSZ}")
        a(f"ds_read_b128 v[{84+8*w}:{87+8*w}], {base} offset:{(w%4)*WSZ+16}")
    a("s_mov_b32 s44, 0xffff0000")
    a("s_waitcnt lgkmcnt(0)")
    for e in range(8):
        a(f"v_add_f32 v{80+e}, v{80+e}, v{88+e}")
        a(f"v_add_f32 v{96+e}, v{96+e}, v{104+e}")
        a(f"v_add_f32 v{112+e}, v{112+e}, v{120+e}")
        a(f"v_add_f32 v{128+e}, v{128+e}, v{136+e}")
        a(f"v_add_f32 v{80+e}, v{80+e}, v{96+e}")
        a(f"v_add_f32 v{112+e}, v{112+e}, v{128+e}")
        a(f"v_add_f32 v{80+e}, v{80+e}, v{112+e}")
    for k in range(4):
        a(f"v_cvt_pk_bf16_f32 v12, v{80+2*k}, v{81+2*k}")
        a(f"v_lshlrev_b32 v13, 16, v12")
        a(f"v_and_b32 v14, s44, v12")
        a(f"v_lshlrev_b32 v{240+2*k}, 16, v{240+2*k}")
        a(f"v_lshlrev_b32 v{241+2*k}, 16, v{241+2*k}")
        a(f"v_add_f32 v13, v13, v{240+2*k}")
        a(f"v_add_f32 v14, v14, v{241+2*k}")
        a(f"v_cvt_pk_bf16_f32 v{16+k}, v13, v14")
    a("s_lshl_b32 s8, s3, 6")
    a("v_add_u32 v5, s8, v3")
    a("s_movk_i32 s9, 896")
    a("v_mul_lo_u32 v5, v5, s9")
    a("v_lshl_add_u32 v5, v4, 4, v5")
    a("s_lshl_b32 s8, s4, 7")
    a("v_add_u32 v5, s8, v5")
    a("global_store_dwordx4 v5, v[16:19], s[30:31]")
    a.label("K4_END")
    a("s_endpgm")
    return a.finalize(), 248, 8 * WSZ

if __name__ == '__main__':
    ks = [('k1_kernel', gen_k1, 256, 512), ('k2_kernel', gen_k2, 256, 512), ('k3_kernel', gen_k3, 256, 512), ('k4_kernel', gen_k4, 224, 512)]
    open('cdna_kernels/' + NAME + '.s', 'w').write(build(ks))
```

```python
from gen3 import *

PFN = 2
def gen_k12():
    a = Asm()
    CH = 46080; UB = 9216; CS = 4608
    LNU = 92160; ST = 928; LNX = LNU + 8 * ST
    PP = 107008; PART = 115200; TT = 139776; CNT = 147968
    stamp = lambda: a.lines.append("; STAMP")
    a("s_cmp_ge_u32 s2, 256")
    a("s_cbranch_scc1 K12_END")
    a("s_load_dwordx16 s[36:51], s[0:1], 0")
    a("s_load_dwordx8 s[52:59], s[0:1], 64")
    a("s_load_dwordx4 s[60:63], s[0:1], 96")
    a("s_load_dwordx2 s[64:65], s[0:1], 112")
    a("v_lshrrev_b32 v1, 6, v0")
    a("v_readfirstlane_b32 s6, v1")
    a("v_and_b32 v2, 63, v0")
    a("s_lshl_b32 s3, s2, 3")
    a("s_add_u32 s3, s3, s6")
    a("s_mul_i32 s7, s3, 896")
    a("v_lshlrev_b32 v3, 4, v2")
    a("v_add_u32 v4, s7, v3")
    for k in range(4): a(f"v_mov_b32 v{208+k}, 0")
    a("v_lshlrev_b32 v5, 1, v0")
    a("s_lshl_b32 s7, s2, 10")
    a("v_add_u32 v5, s7, v5")
    a("s_lshr_b32 s8, s6, 2")
    a("s_and_b32 s9, s6, 3")
    a("s_lshl_b32 s4, s2, 1")
    a("s_add_u32 s4, s4, s8")
    a("s_lshl_b32 s7, s4, 1")
    a("v_mov_b32 v6, s7")
    a(f"s_mov_b32 s20, {L2E}")
    a(f"s_mov_b32 s21, {L2E_LO}")
    a(f"s_mov_b32 s22, {LN2}")
    a(f"s_mov_b32 s23, {INV2PI}")
    a("s_mov_b32 s24, 0xffff0000")
    a("s_mov_b32 s25, 0x07060302")
    a(f"s_mov_b32 s26, {f32bits(1.0/448)}")
    a("v_cmp_gt_u32 vcc, 56, v2")
    a("s_mov_b64 s[28:29], vcc")
    a("s_waitcnt lgkmcnt(0)")
    a("s_mov_b64 exec, s[28:29]")
    a("global_load_dwordx4 v[208:211], v4, s[36:37]")
    a("s_mov_b64 exec, -1")
    a("s_cmp_ge_u32 s2, 224")
    a("s_cbranch_scc1 K12_NOP")
    for i, sp in enumerate((38, 40, 42, 44, 46, 48)):
        a(f"global_load_ushort v{8+i}, v5, s[{sp}:{sp+1}]")
    a("global_load_ushort v14, v6, s[50:51]")
    a("global_load_ushort v200, v6, s[52:53]")
    a.label("K12_NOP")
    a("v_mov_b32 v7, 0")
    a(f"v_mov_b32 v15, {CNT}")
    a("ds_write_b32 v15, v7")
    a("s_cmp_ge_u32 s2, 224")
    a("s_cselect_b32 s7, 0, 8")
    a("s_cbranch_scc1 K12_W0")
    a("s_waitcnt vmcnt(8)")
    a("s_branch K12_W1")
    a.label("K12_W0")
    a("s_waitcnt vmcnt(0)")
    a.label("K12_W1")
    for k in range(4):
        a(f"v_lshlrev_b32 v{212+2*k}, 16, v{208+k}")
        a(f"v_and_b32 v{213+2*k}, s24, v{208+k}")
    a("v_add_f32 v220, v212, v213")
    a("v_add_f32 v221, v214, v215")
    a("v_add_f32 v222, v216, v217")
    a("v_add_f32 v223, v218, v219")
    a("v_add_f32 v220, v220, v221")
    a("v_add_f32 v222, v222, v223")
    a("v_add_f32 v220, v220, v222")
    def allred(r, t):
        a(f"v_add_f32_dpp {r}, {r}, {r} quad_perm:[1,0,3,2] row_mask:0xf bank_mask:0xf")
        a(f"v_add_f32_dpp {r}, {r}, {r} quad_perm:[2,3,0,1] row_mask:0xf bank_mask:0xf")
        a(f"v_add_f32_dpp {r}, {r}, {r} row_half_mirror row_mask:0xf bank_mask:0xf")
        a(f"v_add_f32_dpp {r}, {r}, {r} row_mirror row_mask:0xf bank_mask:0xf")
        a(f"v_mov_b32 {t}, {r}")
        a(f"v_permlane16_swap_b32 {r}, {t}")
        a(f"v_add_f32 {r}, {r}, {t}")
        a(f"v_mov_b32 {t}, {r}")
        a(f"v_permlane32_swap_b32 {r}, {t}")
        a(f"v_add_f32 {r}, {r}, {t}")
    allred('v220', 'v221')
    a("v_mul_f32 v220, s26, v220")
    a("v_mov_b32 v222, 0")
    a("s_mov_b64 exec, s[28:29]")
    for k in range(8):
        a(f"v_sub_f32 v223, v{212+k}, v220")
        a(f"v_fma_f32 v222, v223, v223, v222")
    a("s_mov_b64 exec, -1")
    allred('v222', 'v221')
    a("v_mul_f32 v222, s26, v222")
    a("v_cvt_pk_bf16_f32 v221, v220, v222")
    a("v_lshlrev_b32 v220, 16, v221")
    a("v_and_b32 v222, s24, v221")
    a(f"v_add_f32 v222, {f32bits(1e-5)}, v222")
    a("v_cvt_pk_bf16_f32 v222, v222, v222")
    a("v_lshlrev_b32 v222, 16, v222")
    a("v_sqrt_f32 v222, v222")
    a("v_cvt_pk_bf16_f32 v222, v222, v222")
    a("v_lshlrev_b32 v222, 16, v222")
    a("v_rcp_f32 v222, v222")
    for k in range(4):
        x0 = 212 + 2 * k; x1 = x0 + 1
        a(f"v_sub_f32 v{x0}, v{x0}, v220")
        a(f"v_sub_f32 v{x1}, v{x1}, v220")
        a(f"v_cvt_pk_bf16_f32 v221, v{x0}, v{x1}")
        a(f"v_lshlrev_b32 v{x0}, 16, v221")
        a(f"v_and_b32 v{x1}, s24, v221")
        a(f"v_mul_f32 v{x0}, v{x0}, v222")
        a(f"v_mul_f32 v{x1}, v{x1}, v222")
        a(f"v_cvt_pk_bf16_f32 v{224+k}, v{x0}, v{x1}")
    a(f"s_mul_i32 s7, s6, {ST}")
    a(f"s_add_u32 s7, s7, {LNU}")
    a("v_add_u32 v4, s7, v3")
    a("s_mov_b64 exec, s[28:29]")
    a("ds_write_b128 v4, v[224:227]")
    a(f"ds_write_b128 v4, v[208:211] offset:{8*ST}")
    a("s_mov_b64 exec, -1")
    a("s_cmp_ge_u32 s2, 224")
    a("s_cbranch_scc1 K12_P0SKIP")
    a("s_waitcnt vmcnt(0)")
    stamp()
    for i in range(7):
        a(f"v_lshlrev_b32 v{8+i}, 16, v{8+i}")
    a("v_mul_f32 v15, s20, v14")
    a("v_fma_f32 v16, v14, s20, -v15")
    a("v_fma_f32 v16, v14, s21, v16")
    a("v_exp_f32 v17, v15")
    a("v_mul_f32 v16, s22, v16")
    a("v_fma_f32 v17, v17, v16, v17")
    a("v_cvt_pk_bf16_f32 v17, v17, v17")
    a("v_lshlrev_b32 v17, 16, v17")
    a("v_mul_f32 v20, v17, v8")
    a("v_mul_f32 v21, v17, v9")
    a("v_mul_f32 v20, s20, v20")
    a("v_mul_f32 v21, s23, v21")
    a("v_mul_f32 v18, v17, v10")
    a("v_mul_f32 v19, v17, v11")
    a("v_mul_f32 v22, v12, v18")
    a("v_fma_f32 v22, -v13, v19, v22")
    a("v_mul_f32 v23, v12, v19")
    a("v_fma_f32 v23, v13, v18, v23")
    a("v_lshlrev_b32 v24, 4, v0")
    a(f"v_add_u32 v24, {PP}, v24")
    a("ds_write_b128 v24, v[20:23]")
    a.label("K12_P0SKIP")
    a("s_waitcnt lgkmcnt(0)")
    a("s_barrier")
    stamp()
    a("s_cmp_ge_u32 s6, 7")
    a("s_cbranch_scc1 K12_NOST")
    a("v_lshrrev_b32 v4, 4, v2")
    a("v_bfe_u32 v5, v2, 2, 2")
    a("v_and_b32 v6, 3, v2")
    a(f"s_movk_i32 s7, {ST}")
    a("v_mul_lo_u32 v5, v5, s7")
    a("v_lshl_add_u32 v5, v4, 5, v5")
    a("v_lshl_add_u32 v5, v6, 3, v5")
    a("s_lshl_b32 s7, s6, 7")
    a(f"s_add_u32 s7, s7, {LNU}")
    a("v_add_u32 v5, s7, v5")
    a("ds_read_b64_tr_b16 v[208:209], v5")
    a(f"ds_read_b64_tr_b16 v[210:211], v5 offset:{4*ST}")
    a(f"ds_read_b64_tr_b16 v[212:213], v5 offset:{8*ST}")
    a(f"ds_read_b64_tr_b16 v[214:215], v5 offset:{12*ST}")
    a("v_lshlrev_b32 v4, 12, v0")
    a("s_lshl_b32 s7, s2, 4")
    a("v_add_u32 v4, s7, v4")
    add64(a, 10, 64, WS_XT)
    a("s_waitcnt lgkmcnt(0)")
    a("global_store_dwordx4 v4, v[208:211], s[64:65] sc1")
    a("global_store_dwordx4 v4, v[212:215], s[10:11] sc1")
    a.label("K12_NOST")
    def signal():
        a("s_waitcnt vmcnt(0)")
        a("v_mov_b32 v7, 1")
        a(f"v_mov_b32 v15, {CNT}")
        a("s_mov_b64 exec, 1")
        a("ds_add_rtn_u32 v7, v15, v7")
        a("s_waitcnt lgkmcnt(0)")
        a("v_readfirstlane_b32 s7, v7")
        a("s_cmp_lg_u32 s7, 7")
        a("s_cbranch_scc1 K12_NOSIG%d" % signal.n)
        a("v_mov_b32 v7, 1")
        a("v_mov_b32 v15, 0")
        a("global_atomic_add v15, v7, s[62:63] sc1")
        a.label("K12_NOSIG%d" % signal.n)
        a("s_mov_b64 exec, -1")
        signal.n += 1
    signal.n = 0
    a("s_cmp_ge_u32 s2, 224")
    a("s_cbranch_scc1 K12_TR")
    a("v_and_b32 v3, 15, v2")
    a("v_lshrrev_b32 v4, 4, v2")
    a("v_lshlrev_b32 v5, 3, v3")
    a("v_cvt_f32_u32 v5, v5")
    def bases(row, o0, o1, o2, t0, t1):
        a(f"v_and_b32 {t0}, 7, {row}")
        a(f"v_lshrrev_b32 {t1}, 3, {row}")
        a(f"v_lshl_add_u32 {o0}, {t1}, 7, {t0}")
        a(f"v_and_b32 {t0}, 3, {row}")
        a(f"v_lshlrev_b32 {t0}, 1, {t0}")
        a(f"v_bfe_u32 {t1}, {row}, 2, 1")
        a(f"v_lshl_add_u32 {t0}, {t1}, 7, {t0}")
        a(f"v_add_u32 {t0}, 0x100, {t0}")
        a(f"v_and_b32 {t1}, 1, {row}")
        a(f"v_lshlrev_b32 {t1}, 2, {t1}")
        a(f"v_bfe_u32 {o2}, {row}, 1, 2")
        a(f"v_lshl_add_u32 {t1}, {o2}, 7, {t1}")
        a(f"v_add_u32 {t1}, 0x200, {t1}")
        a(f"v_cmp_gt_u32 vcc, 8, {row}")
        a(f"v_cndmask_b32 {o1}, {t1}, {t0}, vcc")
        a(f"v_lshlrev_b32 {o2}, 7, {row}")
        a(f"v_add_u32 {o2}, 0x400, {o2}")
    bases('v3', 'v6', 'v12', 'v8', 'v9', 'v10')
    a("v_cvt_f32_u32 v6, v6")
    a("v_cvt_f32_u32 v12, v12")
    a("v_cvt_f32_u32 v8, v8")
    a("s_lshl_b32 s7, s6, 10")
    a(f"s_add_u32 s7, s7, {PP}")
    a("v_lshlrev_b32 v9, 6, v4")
    a("v_add_u32 v9, s7, v9")
    for r in range(12): a(f"v_mov_b32 v{16+r}, 0")
    FX = ['v5', 'v6', 'v12', 'v8']
    def frag(setid, X, hl): return 80 + 32 * setid + 8 * X + 4 * hl
    def mfmas(setid):
        out = []
        for b in range(3):
            acc = f"v[{16+4*b}:{19+4*b}]"
            Fh = frag(setid, b + 1, 0); Fl = frag(setid, b + 1, 1); Gh = frag(setid, 0, 0); Gl = frag(setid, 0, 1)
            out.append(f"v_mfma_f32_16x16x32_bf16 {acc}, v[{Fh}:{Fh+3}], v[{Gh}:{Gh+3}], {acc}")
            out.append(f"v_mfma_f32_16x16x32_bf16 {acc}, v[{Fh}:{Fh+3}], v[{Gl}:{Gl+3}], {acc}")
            out.append(f"v_mfma_f32_16x16x32_bf16 {acc}, v[{Fl}:{Fl+3}], v[{Gh}:{Gh+3}], {acc}")
        return out
    for e in range(4):
        a(f"ds_read_b128 v[{28+4*e}:{31+4*e}], v9 offset:{e*16}")
    for s in range(4):
        body = []
        st = s & 1
        for e in range(4):
            P = 28 + 4 * e
            body.append(f"s_waitcnt lgkmcnt({3 if s < 3 else 3-e})")
            zr = [44 + X for X in range(4)]; zi = [48 + X for X in range(4)]
            er = [52 + X for X in range(4)]; sn = [56 + X for X in range(4)]; cs = [60 + X for X in range(4)]
            for X in range(4): body.append(f"v_mul_f32 v{zr[X]}, v{P}, {FX[X]}")
            for X in range(4): body.append(f"v_mul_f32 v{zi[X]}, v{P+1}, {FX[X]}")
            for X in range(4): body.append(f"v_exp_f32 v{er[X]}, v{zr[X]}")
            for X in range(4): body.append(f"v_fract_f32 v{zi[X]}, v{zi[X]}")
            for X in range(4): body.append(f"v_sin_f32 v{sn[X]}, v{zi[X]}")
            for X in range(4): body.append(f"v_cos_f32 v{cs[X]}, v{zi[X]}")
            for X in range(4): body.append(f"v_mul_f32 v{sn[X]}, v{er[X]}, v{sn[X]}")
            for X in range(4): body.append(f"v_mul_f32 v{cs[X]}, v{er[X]}, v{cs[X]}")
            body.append(f"v_mul_f32 v64, v{P+2}, v{cs[0]}")
            body.append(f"v_mul_f32 v65, v{P+2}, v{sn[0]}")
            body.append(f"v_fma_f32 v64, -v{P+3}, v{sn[0]}, v64")
            body.append(f"v_fma_f32 v65, -v{P+3}, v{cs[0]}, -v65")
            if s < 3:
                body.append(f"ds_read_b128 v[{P}:{P+3}], v9 offset:{(s+1)*256+e*16}")
            vals = [(64, 65)] + [(cs[X], sn[X]) for X in range(1, 4)]
            order = [1, 2, 3, 0]
            for X in order:
                r, i = vals[X]
                body.append(f"v_perm_b32 v{frag(st,X,0)+e}, v{i}, v{r}, s25")
                body.append(f"v_and_b32 v{66+2*X}, s24, v{r}")
                body.append(f"v_and_b32 v{67+2*X}, s24, v{i}")
            for X in order:
                r, i = vals[X]
                body.append(f"v_sub_f32 v{66+2*X}, v{r}, v{66+2*X}")
                body.append(f"v_sub_f32 v{67+2*X}, v{i}, v{67+2*X}")
            for X in order:
                body.append(f"v_perm_b32 v{frag(st,X,1)+e}, v{67+2*X}, v{66+2*X}, s25")
        if s > 0:
            body = interleave(body, mfmas((s - 1) & 1), start=4)
        for b in body: a(b)
        if s == 0:
            signal()
    for m in mfmas(1): a(m)
    stamp()
    a("s_mul_i32 s7, s6, 3072")
    a(f"s_add_u32 s7, s7, {PART}")
    a("v_lshlrev_b32 v9, 2, v2")
    a("v_add_u32 v9, s7, v9")
    for r in range(12):
        a(f"ds_write_b32 v9, v{16+r} offset:{r*256}")
    a("s_waitcnt lgkmcnt(0)")
    a("s_barrier")
    stamp()
    a("s_mul_i32 s10, s8, 12288")
    a("s_lshl_b32 s11, s9, 8")
    a("s_add_u32 s10, s10, s11")
    a(f"s_add_u32 s10, s10, {PART}")
    a("v_lshlrev_b32 v9, 2, v2")
    a("v_add_u32 v9, s10, v9")
    for b in range(3):
        for w in range(4):
            a(f"ds_read_b32 v{28+4*b+w}, v9 offset:{w*3072 + b*1024}")
    a("s_cmp_lg_u32 s6, 0")
    a("s_cbranch_scc1 K12_NOPOLL")
    a("v_mov_b32 v15, 0")
    a("s_mov_b32 s12, 0")
    a.label("K12_POLL")
    a("global_load_dword v7, v15, s[62:63] sc1")
    a("s_waitcnt vmcnt(0)")
    a("v_readfirstlane_b32 s13, v7")
    a("s_add_u32 s12, s12, 1")
    a("s_cmp_ge_u32 s13, 256")
    a("s_cbranch_scc1 K12_NOPOLL")
    a("s_sleep 8")
    a("s_cmp_lt_u32 s12, 20000")
    a("s_cbranch_scc1 K12_POLL")
    a.label("K12_NOPOLL")
    a("v_lshlrev_b32 v10, 2, v4")
    a("v_add_u32 v10, s9, v10")
    bases('v10', 'v44', 'v45', 'v46', 'v11', 'v13')
    a("s_lshl_b32 s11, s8, 12")
    a(f"s_add_u32 s11, s11, {TT}")
    a("s_movk_i32 s12, 0x7f")
    a("s_movk_i32 s13, 0x800")
    for b in range(3):
        a(f"v_lshl_add_u32 v{44+b}, v3, 3, v{44+b}")
        a(f"v_cvt_f32_u32 v{48+b}, v{44+b}")
        a(f"v_lshrrev_b32 v{48+b}, 16, v{48+b}")
        a(f"v_subrev_u32 v{48+b}, 0x4280, v{48+b}")
        a(f"v_med3_i32 v{48+b}, v{48+b}, v{44+b}, s12")
        a(f"v_mov_b32 v52, 1000")
        a(f"v_cmp_ge_u32 vcc, s13, v{44+b}")
        a(f"v_cndmask_b32 v{48+b}, v52, v{48+b}, vcc")
        a(f"v_lshlrev_b32 v{48+b}, 2, v{48+b}")
        a(f"v_add_u32 v{48+b}, s11, v{48+b}")
    a("s_waitcnt lgkmcnt(0)")
    for b in range(3):
        a(f"v_add_f32 v{28+4*b}, v{28+4*b}, v{29+4*b}")
        a(f"v_add_f32 v{30+4*b}, v{30+4*b}, v{31+4*b}")
        a(f"v_add_f32 v{28+4*b}, v{28+4*b}, v{30+4*b}")
        a(f"ds_write_b32 v{48+b}, v{28+4*b}")
    a("s_waitcnt lgkmcnt(0)")
    a("s_barrier")
    stamp()
    a("s_lshl_b32 s5, s4, 12")
    a(f"s_mul_i32 s10, s8, {CH}")
    a("v_and_b32 v3, 0xff, v0")
    a("v_lshlrev_b32 v4, 4, v3")
    a("v_subrev_u32 v5, 32, v4")
    a("s_add_u32 s16, s64, s5")
    a("s_addc_u32 s17, s65, 0")
    a("s_mov_b32 s18, 4096")
    a("s_mov_b32 s19, 0x00020000")
    a("buffer_load_dwordx4 v[16:19], v5, s[16:19], 0 offen sc1")
    a("buffer_load_dwordx4 v[20:23], v5, s[16:19], 0 offen offset:16 sc1")
    a("buffer_load_dwordx4 v[208:211], v4, s[16:19], 0 offen offset:4064 sc1")
    a("buffer_load_dwordx4 v[212:215], v4, s[16:19], 0 offen offset:4080 sc1")
    add64(a, 14, 16, WS_XT)
    add64(a, 30, 16, WS_HT)
    a("buffer_load_dwordx4 v[192:195], v4, s[16:19], 0 offen sc1")
    a("global_load_dwordx4 v[196:199], v4, s[14:15] sc1")
    a("v_lshlrev_b32 v10, 3, v3")
    a("v_sub_u32 v10, 0x7ff, v10")
    for e in range(8):
        a(f"v_subrev_u32 v{44+e}, {e}, v10")
        a(f"v_cvt_f32_u32 v{52+e}, v{44+e}")
        a(f"v_cvt_pk_bf16_f32 v{52+e}, v{52+e}, v{52+e}")
        a(f"v_and_b32 v{52+e}, 0xffff, v{52+e}")
        a(f"v_subrev_u32 v{52+e}, 0x4280, v{52+e}")
        a(f"v_med3_i32 v{52+e}, v{52+e}, v{44+e}, s12")
        a(f"v_lshlrev_b32 v{52+e}, 2, v{52+e}")
        a(f"v_add_u32 v{52+e}, s11, v{52+e}")
        a(f"ds_read_b32 v{28+e}, v{52+e}")
    a("v_add_u32 v6, s10, v4")
    a("s_waitcnt lgkmcnt(0)")
    for k in range(4):
        a(f"v_cvt_pk_bf16_f32 v{60+k}, v{28+2*k}, v{29+2*k}")
        a(f"v_lshlrev_b32 v70, 16, v{60+k}")
        a(f"v_and_b32 v71, s24, v{60+k}")
        a(f"v_sub_f32 v70, v{28+2*k}, v70")
        a(f"v_sub_f32 v71, v{29+2*k}, v71")
        a(f"v_cvt_pk_bf16_f32 v{64+k}, v70, v71")
    a("ds_write_b128 v6, v[60:63]")
    a("ds_write_b128 v6, v[64:67] offset:4608")
    a("v_mov_b32 v24, 0"); a("v_mov_b32 v25, 0"); a("v_mov_b32 v26, 0"); a("v_mov_b32 v27, 0")
    a("v_cmp_gt_u32 vcc, 32, v3")
    a("s_and_saveexec_b64 s[28:29], vcc")
    a("ds_write_b128 v6, v[24:27] offset:4096")
    a("ds_write_b128 v6, v[24:27] offset:8704")
    a("s_mov_b64 exec, s[28:29]")
    a("v_and_b32 v7, 15, v2")
    a("v_lshrrev_b32 v8, 4, v2")
    a("v_lshlrev_b32 v9, 5, v7")
    a("v_lshlrev_b32 v10, 4, v8")
    a("v_sub_u32 v9, v10, v9")
    a("s_lshl_b32 s11, s9, 6")
    a("s_sub_u32 s12, s10, s11")
    a("s_add_u32 s13, s12, 928")
    a("v_add_u32 v9, s13, v9")
    a("v_add_u32 v11, 1, v7")
    a("v_and_b32 v12, 7, v11")
    a("v_lshrrev_b32 v13, 3, v11")
    a("v_add_u32 v13, v13, v8")
    a("v_lshlrev_b32 v14, 2, v12")
    a("s_mov_b32 s13, 0xc0b6e590")
    a("v_lshrrev_b32 v14, v14, s13")
    a("v_and_b32 v14, 15, v14")
    a("v_add_u32 v13, v13, v14")
    a("v_lshlrev_b32 v13, 4, v13")
    a(f"s_movk_i32 s13, {CS}")
    a("v_mul_lo_u32 v12, v12, s13")
    a("v_add_u32 v13, v13, v12")
    a(f"s_add_u32 s13, s12, {UB + 448}")
    a("v_add_u32 v10, s13, v13")
    for r in range(32): a(f"v_mov_b32 v{160+r}, 0")
    def copies(c0, off):
        for k in range(6): a(f"v_mov_b32 v{24+k}, v{c0+k+1}")
        for k in range(7): a(f"v_alignbyte_b32 v{30+k}, v{c0+k+1}, v{c0+k}, 2")
        for k in range(6): a(f"v_alignbyte_b32 v{38+k}, v{c0+k+2}, v{c0+k+1}, 2")
        src = {0: c0, 2: 24, 4: c0 + 2, 6: 26, 1: 30, 5: 32, 3: 38, 7: 40}
        for s in range(8):
            a(f"ds_write_b128 v6, v[{src[s]}:{src[s]+3}] offset:{UB + s*CS + OS[s]*16 + off}")
    a("s_waitcnt vmcnt(4)")
    stamp()
    copies(16, 0)
    a("s_waitcnt vmcnt(2)")
    a("s_cmp_lg_u32 s9, 0")
    a("s_cbranch_scc1 K12_NOC2")
    a("v_cmp_gt_u32 vcc, 2, v3")
    a("s_and_saveexec_b64 s[28:29], vcc")
    copies(208, 4096)
    a("s_mov_b64 exec, s[28:29]")
    a.label("K12_NOC2")
    a("s_waitcnt lgkmcnt(0)")
    a("s_barrier")
    stamp()
    for gi in range(2):
        if gi == 1:
            a("v_subrev_u32 v9, 0x100, v9")
            a("v_subrev_u32 v10, 0x100, v10")
        for k in range(8):
            a(f"ds_read_b128 v[{128+4*k}:{131+4*k}], v10 offset:{512*k}")
            a(f"ds_read_b128 v[{64+8*k}:{67+8*k}], v9 offset:{512*(7-k)}")
            a(f"ds_read_b128 v[{68+8*k}:{71+8*k}], v9 offset:{512*(7-k)+4608}")
        for k in range(8):
            a(f"s_waitcnt lgkmcnt({min(15, 24-3*(k+1))})")
            pairs = [(k, dl) for dl in range(k + 1)] + [(t, k) for t in range(k)]
            for (t, dl) in pairs:
                if t + dl > 7: continue
                seg = t + dl
                acc = f"v[{160+4*seg}:{163+4*seg}]"
                a(f"v_mfma_f32_16x16x32_bf16 {acc}, v[{64+8*t}:{67+8*t}], v[{128+4*dl}:{131+4*dl}], {acc}")
                a(f"v_mfma_f32_16x16x32_bf16 {acc}, v[{68+8*t}:{71+8*t}], v[{128+4*dl}:{131+4*dl}], {acc}")
    a("s_barrier")
    stamp()
    a("s_lshl_b32 s11, s6, 13")
    a("v_lshlrev_b32 v9, 2, v2")
    a("v_add_u32 v9, s11, v9")
    for r in range(32):
        a(f"ds_write_b32 v9, v{160+r} offset:{256*r}")
    a("s_waitcnt lgkmcnt(0)")
    a("s_barrier")
    a("v_lshrrev_b32 v9, 5, v3")
    a("v_bfe_u32 v10, v3, 1, 4")
    a("v_and_b32 v11, 3, v10")
    a("v_lshl_add_u32 v9, v9, 2, v11")
    a("v_lshlrev_b32 v9, 8, v9")
    a("v_lshrrev_b32 v10, 2, v10")
    a("v_lshl_add_u32 v9, v10, 6, v9")
    a("v_and_b32 v11, 1, v3")
    a("v_lshl_add_u32 v9, v11, 5, v9")
    a("s_lshl_b32 s11, s8, 15")
    a("v_add_u32 v9, s11, v9")
    for w in range(4):
        a(f"ds_read_b128 v[{64+8*w}:{67+8*w}], v9 offset:{8192*w}")
        a(f"ds_read_b128 v[{68+8*w}:{71+8*w}], v9 offset:{8192*w+16}")
    a("s_waitcnt vmcnt(0)")
    a("v_lshlrev_b32 v200, 16, v200")
    a("s_waitcnt lgkmcnt(0)")
    for e in range(8):
        a(f"v_add_f32 v{64+e}, v{64+e}, v{72+e}")
        a(f"v_add_f32 v{80+e}, v{80+e}, v{88+e}")
        a(f"v_add_f32 v{64+e}, v{64+e}, v{80+e}")
    for k in range(4):
        a(f"v_cvt_pk_bf16_f32 v24, v{64+2*k}, v{65+2*k}")
        a(f"v_lshlrev_b32 v25, 16, v{192+k}")
        a(f"v_and_b32 v26, s24, v{192+k}")
        a(f"v_mul_f32 v25, v25, v200")
        a(f"v_mul_f32 v26, v26, v200")
        a(f"v_cvt_pk_bf16_f32 v27, v25, v26")
        a(f"v_lshlrev_b32 v25, 16, v24")
        a(f"v_and_b32 v26, s24, v24")
        a(f"v_lshlrev_b32 v28, 16, v27")
        a(f"v_and_b32 v29, s24, v27")
        a(f"v_add_f32 v25, v25, v28")
        a(f"v_add_f32 v26, v26, v29")
        a(f"v_cvt_pk_bf16_f32 v24, v25, v26")
        a(f"v_lshlrev_b32 v25, 16, v24")
        a(f"v_and_b32 v26, s24, v24")
        a(f"v_lshlrev_b32 v28, 16, v{196+k}")
        a(f"v_and_b32 v29, s24, v{196+k}")
        a(f"v_add_f32 v25, v25, v28")
        a(f"v_add_f32 v26, v26, v29")
        a(f"v_cvt_pk_bf16_f32 v{32+k}, v25, v26")
    a("global_store_dwordx4 v4, v[32:35], s[30:31]")
    a("s_endpgm")
    a.label("K12_TR")
    a.lines.append("; STAMP0")
    signal()
    a("s_getpc_b64 s[12:13]")
    a.label("K12_PC")
    a("s_add_u32 s12, s12, k3_kernel-K12_PC")
    a("s_addc_u32 s13, s13, 0")
    a("v_lshlrev_b32 v3, 4, v0")
    a("s_mov_b32 s14, CODE_END-k3_kernel-16")
    for i in range(PFN):
        if i: a("v_add_u32 v3, 8192, v3")
        a("v_min_u32 v4, s14, v3")
        a(f"global_load_dwordx4 v[{48+4*i}:{51+4*i}], v4, s[12:13]")
    a("s_waitcnt vmcnt(0)")
    a("s_sub_u32 s3, s2, 224")
    a("s_lshl_b32 s3, s3, 3")
    a("s_add_u32 s3, s3, s6")
    a("s_mul_i32 s7, s6, 5120")
    a("v_lshrrev_b32 v3, 3, v2")
    a("v_and_b32 v4, 7, v2")
    a("s_movk_i32 s8, 3584")
    a("v_mul_lo_u32 v5, v3, s8")
    a("v_lshl_add_u32 v5, v4, 4, v5")
    a("s_movk_i32 s8, 160")
    a("v_mul_lo_u32 v6, v3, s8")
    a("v_lshl_add_u32 v6, v4, 4, v6")
    a("v_add_u32 v6, s7, v6")
    a("v_lshrrev_b32 v7, 4, v2")
    a("v_bfe_u32 v8, v2, 2, 2")
    a("v_lshl_add_u32 v7, v7, 2, v8")
    a("v_mul_lo_u32 v7, v7, s8")
    a("v_and_b32 v8, 3, v2")
    a("v_lshl_add_u32 v7, v8, 4, v7")
    a("v_add_u32 v7, s7, v7")
    a("v_lshlrev_b32 v8, 4, v2")
    add64(a, 34, 64, WS_W1F)
    a.label("K12_TRL")
    a("s_cmp_ge_u32 s3, 392")
    a("s_cbranch_scc1 K12_END")
    a("s_mul_i32 s9, s3, 9363")
    a("s_lshr_b32 s9, s9, 18")
    a("s_mul_i32 s10, s9, 28")
    a("s_sub_u32 s10, s3, s10")
    a("s_mul_i32 s11, s9, 114688")
    a("s_lshl_b32 s12, s10, 7")
    a("s_add_u32 s11, s11, s12")
    a("v_add_u32 v9, s11, v5")
    for i in range(4):
        if i: a(f"v_add_u32 v9, {8*3584}, v9")
        a(f"global_load_dwordx4 v[{16+4*i}:{19+4*i}], v9, s[56:57]")
    for i in range(4):
        a(f"s_waitcnt vmcnt({3-i})")
        a(f"ds_write_b128 v6, v[{16+4*i}:{19+4*i}] offset:{8*160*i}")
    a("s_waitcnt lgkmcnt(0)")
    for fgl in range(2):
        for T in range(2):
            b = 32 + 8 * fgl + 4 * T
            a(f"ds_read_b64_tr_b16 v[{b}:{b+1}], v7 offset:{64*fgl+8*T}")
            a(f"ds_read_b64_tr_b16 v[{b+2}:{b+3}], v7 offset:{64*fgl+8*T+16*160}")
    a("s_mul_i32 s11, s10, 57344")
    a("s_lshl_b32 s12, s9, 11")
    a("s_add_u32 s11, s11, s12")
    a("v_add_u32 v9, s11, v8")
    a("v_add_u32 v10, 28672, v9")
    a("s_waitcnt lgkmcnt(0)")
    a("global_store_dwordx4 v9, v[32:35], s[34:35]")
    a("global_store_dwordx4 v9, v[36:39], s[34:35] offset:1024")
    a("global_store_dwordx4 v10, v[40:43], s[34:35]")
    a("global_store_dwordx4 v10, v[44:47], s[34:35] offset:1024")
    a("s_add_u32 s3, s3, 256")
    a("s_branch K12_TRL")
    a.label("K12_END")
    a("s_endpgm")
    return a.finalize(), 232, CNT + 64

if __name__ == '__main__':
    ks = [('k12_kernel', gen_k12, 256, 512), ('k3_kernel', gen_k3, 256, 512), ('k4_kernel', gen_k4, 224, 512)]
    open('cdna_kernels/' + NAME + '.s', 'w').write(build(ks))
```

```python
from gen3 import *

PFN = 2
WS_ST = 0x0
WS_FL = 0x10000
def gen_k12():
    a = Asm()
    CH = 26624; UB = 9216; CS = 4352
    OS4 = [0, 64, 112, 160]
    TS = 264
    LIN = 92160; LS = 4224
    PART = 115200; TT = 139776; CNT = 147968; XTL = 148096
    stamp = lambda: a.lines.append("; STAMP")
    def gettag(lbl):
        a("v_readfirstlane_b32 s68, v207")
        a("s_cmp_lg_u32 s68, 0")
        a(f"s_cbranch_scc1 {lbl}_OK")
        a("s_mov_b32 s69, 0")
        a.label(f"{lbl}_L")
        a("s_sleep 4")
        a("v_mov_b32 v207, 0")
        a("global_load_dword v207, v207, s[62:63] sc1")
        a("s_waitcnt vmcnt(0)")
        a("v_readfirstlane_b32 s68, v207")
        a("s_add_u32 s69, s69, 1")
        a("s_cmp_lg_u32 s68, 0")
        a(f"s_cbranch_scc1 {lbl}_OK")
        a("s_cmp_lt_u32 s69, 20000")
        a(f"s_cbranch_scc1 {lbl}_L")
        a.label(f"{lbl}_OK")
    a("s_cmp_ge_u32 s2, 256")
    a("s_cbranch_scc1 K12_END")
    a("s_load_dwordx16 s[36:51], s[0:1], 0")
    a("s_load_dwordx8 s[52:59], s[0:1], 64")
    a("s_load_dwordx4 s[60:63], s[0:1], 96")
    a("s_load_dwordx2 s[64:65], s[0:1], 112")
    a("v_lshrrev_b32 v1, 6, v0")
    a("v_readfirstlane_b32 s6, v1")
    a("v_and_b32 v2, 63, v0")
    a("s_lshr_b32 s8, s6, 2")
    a("s_and_b32 s9, s6, 3")
    a("s_sub_u32 s4, s2, 32")
    a("s_lshl_b32 s4, s4, 1")
    a(f"s_mov_b32 s20, {L2E}")
    a(f"s_mov_b32 s21, {L2E_LO}")
    a(f"s_mov_b32 s22, {LN2}")
    a(f"s_mov_b32 s23, {INV2PI}")
    a("s_mov_b32 s24, 0xffff0000")
    a("s_mov_b32 s25, 0x07060302")
    a("s_cmp_lt_u32 s2, 32")
    a("s_cbranch_scc1 K12_TR")
    a("s_add_u32 s4, s4, s8")
    a("v_and_b32 v5, 31, v2")
    a("v_lshlrev_b32 v5, 1, v5")
    a("s_lshl_b32 s7, s4, 9")
    a("s_lshl_b32 s10, s9, 7")
    a("s_add_u32 s7, s7, s10")
    a("v_add_u32 v5, s7, v5")
    a("s_lshl_b32 s7, s4, 1")
    a("v_mov_b32 v6, s7")
    a("s_sub_u32 s3, s2, 32")
    a("s_and_b32 s66, s3, 31")
    a("s_lshr_b32 s67, s3, 5")
    a("v_lshrrev_b32 v7, 3, v0")
    a("v_and_b32 v8, 7, v0")
    a("s_lshl_b32 s7, s66, 6")
    a("v_add_u32 v9, s7, v7")
    a("s_movk_i32 s7, 896")
    a("v_mul_lo_u32 v9, v9, s7")
    a("v_lshl_add_u32 v9, v8, 4, v9")
    a("s_lshl_b32 s7, s67, 7")
    a("v_add_u32 v9, s7, v9")
    a("s_movk_i32 s7, 144")
    a("v_mul_lo_u32 v206, v7, s7")
    a("v_lshl_add_u32 v206, v8, 4, v206")
    a(f"v_add_u32 v206, {XTL}, v206")
    a("v_mov_b32 v7, 0")
    a(f"v_mov_b32 v15, {CNT}")
    a("ds_write_b32 v15, v7")
    a("ds_write_b32 v15, v7 offset:4")
    a("s_waitcnt lgkmcnt(0)")
    a("global_load_dwordx4 v[208:211], v9, s[36:37]")
    a("global_load_ushort v14, v6, s[50:51]")
    for bt in range(2):
        for i, sp in enumerate((38, 40, 42, 44, 46, 48)):
            a(f"global_load_ushort v{176+8*bt+i}, v5, s[{sp}:{sp+1}] offset:{64*bt}")
    a("global_load_ushort v200, v6, s[52:53]")
    a("v_cmp_lt_u32 s[26:27], 31, v2")
    a("v_mov_b32 v8, 1.0")
    a(f"v_mov_b32 v9, {f32bits(128.0)}")
    a("v_cndmask_b32 v202, v8, v9, s[26:27]")
    a(f"v_mov_b32 v8, {f32bits(8.0)}")
    a(f"v_mov_b32 v9, {f32bits(1024.0)}")
    a("v_cndmask_b32 v203, v8, v9, s[26:27]")
    a("v_and_b32 v8, 31, v2")
    a(f"s_movk_i32 s7, {TS}")
    a("v_mul_lo_u32 v8, v8, s7")
    a(f"s_mul_i32 s7, s6, {32*TS}")
    a("v_add_u32 v204, s7, v8")
    a("v_lshrrev_b32 v8, 5, v2")
    a("v_lshl_add_u32 v205, v8, 6, v204")
    a("v_and_b32 v3, 15, v2")
    a("v_lshrrev_b32 v4, 4, v2")
    def bases(row, o0, o1, o2, t0, t1):
        a(f"v_and_b32 {t0}, 7, {row}")
        a(f"v_lshrrev_b32 {t1}, 3, {row}")
        a(f"v_lshl_add_u32 {o0}, {t1}, 7, {t0}")
        a(f"v_and_b32 {t0}, 3, {row}")
        a(f"v_lshlrev_b32 {t0}, 1, {t0}")
        a(f"v_bfe_u32 {t1}, {row}, 2, 1")
        a(f"v_lshl_add_u32 {t0}, {t1}, 7, {t0}")
        a(f"v_add_u32 {t0}, 0x100, {t0}")
        a(f"v_and_b32 {t1}, 1, {row}")
        a(f"v_lshlrev_b32 {t1}, 2, {t1}")
        a(f"v_bfe_u32 {o2}, {row}, 1, 2")
        a(f"v_lshl_add_u32 {t1}, {o2}, 7, {t1}")
        a(f"v_add_u32 {t1}, 0x200, {t1}")
        a(f"v_cmp_gt_u32 vcc, 8, {row}")
        a(f"v_cndmask_b32 {o1}, {t1}, {t0}, vcc")
        a(f"v_lshlrev_b32 {o2}, 7, {row}")
        a(f"v_add_u32 {o2}, 0x400, {o2}")
    bases('v3', 'v6', 'v12', 'v8', 'v9', 'v10')
    a(f"s_movk_i32 s10, {8*TS}")
    a("v_mul_lo_u32 v9, v4, s10")
    a("v_add_u32 v9, s7, v9")
    a("v_lshrrev_b32 v10, 2, v3")
    a("v_add_u32 v10, 25, v10")
    a("v_lshl_add_u32 v144, v10, 3, v9")
    a("v_and_b32 v10, 3, v3")
    a("v_add_u32 v10, 29, v10")
    a("v_lshl_add_u32 v145, v10, 3, v9")
    for (b, rc, ro) in (('v6', 146, 147), ('v12', 148, 149)):
        a(f"v_lshrrev_b32 v10, 7, {b}")
        a("v_add_u32 v10, 8, v10")
        a(f"v_lshl_add_u32 v{rc}, v10, 3, v9")
        a(f"v_and_b32 v10, 7, {b}")
        a(f"v_lshl_add_u32 v{ro}, v10, 3, v9")
    a("v_lshrrev_b32 v10, 7, v8")
    a("v_min_u32 v10, 16, v10")
    a("v_add_u32 v10, 8, v10")
    a("v_lshl_add_u32 v150, v10, 3, v9")
    for r in range(12): a(f"v_mov_b32 v{160+r}, 0")
    a("v_lshlrev_b32 v10, 2, v4")
    a("v_add_u32 v10, s9, v10")
    bases('v10', 'v44', 'v45', 'v46', 'v11', 'v13')
    a("s_lshl_b32 s11, s8, 12")
    a(f"s_add_u32 s11, s11, {TT}")
    a("s_movk_i32 s12, 0x7f")
    a("s_movk_i32 s13, 0x800")
    for b in range(3):
        a(f"v_lshl_add_u32 v{44+b}, v3, 3, v{44+b}")
        a(f"v_cvt_f32_u32 v{48+b}, v{44+b}")
        a(f"v_lshrrev_b32 v{48+b}, 16, v{48+b}")
        a(f"v_subrev_u32 v{48+b}, 0x4280, v{48+b}")
        a(f"v_med3_i32 v{48+b}, v{48+b}, v{44+b}, s12")
        a(f"v_mov_b32 v52, 1000")
        a(f"v_cmp_ge_u32 vcc, s13, v{44+b}")
        a(f"v_cndmask_b32 v{48+b}, v52, v{48+b}, vcc")
        a(f"v_lshlrev_b32 v{48+b}, 2, v{48+b}")
        a(f"v_add_u32 v{152+b}, s11, v{48+b}")
    a("s_waitcnt vmcnt(13)")
    a("v_lshlrev_b32 v14, 16, v14")
    a("v_mul_f32 v15, s20, v14")
    a("v_fma_f32 v16, v14, s20, -v15")
    a("v_fma_f32 v16, v14, s21, v16")
    a("v_exp_f32 v17, v15")
    a("v_mul_f32 v16, s22, v16")
    a("v_fma_f32 v17, v17, v16, v17")
    a("v_cvt_pk_bf16_f32 v17, v17, v17")
    a("v_lshlrev_b32 v201, 16, v17")
    a("ds_write_b128 v206, v[208:211]")
    a("s_waitcnt vmcnt(7)")
    stamp()
    def cmul(d, x, y):
        return [f"v_mul_f32 v{d}, v{x}, v{y}", f"v_mul_f32 v{d+1}, v{x}, v{y+1}",
                f"v_fma_f32 v{d}, -v{x+1}, v{y+1}, v{d}", f"v_fma_f32 v{d+1}, v{x+1}, v{y}, v{d+1}"]
    def build(bt):
        pb = 176 + 8 * bt
        for i in range(6): a(f"v_lshlrev_b32 v{pb+i}, 16, v{pb+i}")
        a(f"v_mul_f32 v8, v201, v{pb}")
        a(f"v_mul_f32 v9, v201, v{pb+1}")
        a("v_mul_f32 v8, s20, v8")
        a("v_mul_f32 v9, s23, v9")
        a(f"v_mul_f32 v10, v201, v{pb+2}")
        a(f"v_mul_f32 v11, v201, v{pb+3}")
        a(f"v_mul_f32 v28, v{pb+4}, v10")
        a(f"v_fma_f32 v28, -v{pb+5}, v11, v28")
        a(f"v_mul_f32 v29, v{pb+4}, v11")
        a(f"v_fma_f32 v29, v{pb+5}, v10, v29")
        for (ex, d, t) in (('v202', 32, 10), ('v203', 30, 12)):
            a(f"v_mul_f32 v{t}, v8, {ex}")
            a(f"v_mul_f32 v{t+1}, v9, {ex}")
        for (ex, d, t) in (('v202', 32, 10), ('v203', 30, 12)):
            a(f"v_exp_f32 v{t}, v{t}")
            a(f"v_fract_f32 v{t+1}, v{t+1}")
        for (ex, d, t) in (('v202', 32, 10), ('v203', 30, 12)):
            a(f"v_cos_f32 v{d}, v{t+1}")
            a(f"v_sin_f32 v{d+1}, v{t+1}")
        for (ex, d, t) in (('v202', 32, 10), ('v203', 30, 12)):
            a(f"v_mul_f32 v{d}, v{t}, v{d}")
            a(f"v_mul_f32 v{d+1}, v{t}, v{d+1}")
        Y = lambda k: 30 + 2 * k
        a("v_mov_b32 v12, 1.0"); a("v_mov_b32 v13, 0")
        for l in cmul(Y(2), Y(1), Y(1)): a(l)
        for l in cmul(46, 30, 30): a(l)
        for l in cmul(Y(3), Y(2), Y(1)): a(l)
        for l in cmul(Y(4), Y(2), Y(2)): a(l)
        for l in cmul(Y(6), Y(3), Y(3)): a(l)
        for l in cmul(Y(5), Y(4), Y(1)): a(l)
        for l in cmul(Y(7), Y(4), Y(3)): a(l)
        a("ds_write_b64 v205, v[12:13]")
        for k in range(1, 8): a(f"ds_write_b64 v205, v[{Y(k)}:{Y(k)+1}] offset:{8*k}")
        a("s_mov_b64 exec, s[26:27]")
        a(f"ds_write_b64 v204, v[30:31] offset:{8*16}")
        a(f"ds_write_b64 v204, v[46:47] offset:{8*24}")
        for k in range(1, 8):
            for l in cmul(48 + 2 * k, 30, Y(k)): a(l)
        for k in range(1, 8): a(f"ds_write_b64 v204, v[{48+2*k}:{49+2*k}] offset:{8*(16+k)}")
        a("s_not_b64 exec, s[26:27]")
        for l in cmul(50, 46, 30): a(l)
        for l in cmul(52, 46, 46): a(l)
        for l in cmul(58, 28, 30): a(l)
        for l in cmul(60, 28, 46): a(l)
        for l in cmul(54, 52, 52): a(l)
        for l in cmul(62, 28, 50): a(l)
        for l in cmul(56, 54, 52): a(l)
        a(f"ds_write_b64 v204, v[12:13] offset:{8*25}")
        for k in range(3): a(f"ds_write_b64 v204, v[{52+2*k}:{53+2*k}] offset:{8*(26+k)}")
        a(f"ds_write_b64 v204, v[28:29] offset:{8*29}")
        for k in range(3): a(f"ds_write_b64 v204, v[{58+2*k}:{59+2*k}] offset:{8*(30+k)}")
        a("s_mov_b64 exec, -1")
    def frag(setid, X, hl): return 80 + 32 * setid + 8 * X + 4 * hl
    def mfmas(setid):
        out = []
        for b in range(3):
            acc = f"v[{160+4*b}:{163+4*b}]"
            Fh = frag(setid, b + 1, 0); Fl = frag(setid, b + 1, 1); Gh = frag(setid, 0, 0); Gl = frag(setid, 0, 1)
            out.append(f"v_mfma_f32_16x16x32_bf16 {acc}, v[{Fh}:{Fh+3}], v[{Gh}:{Gh+3}], {acc}")
            out.append(f"v_mfma_f32_16x16x32_bf16 {acc}, v[{Fh}:{Fh+3}], v[{Gl}:{Gl+3}], {acc}")
            out.append(f"v_mfma_f32_16x16x32_bf16 {acc}, v[{Fl}:{Fl+3}], v[{Gh}:{Gh+3}], {acc}")
        return out
    def treads(idx):
        b = 16 + 14 * (idx % 3)
        off = idx * TS
        return [f"ds_read_b64 v[{b+2*k}:{b+2*k+1}], v{144+k} offset:{off}" for k in range(7)]
    pend = []
    for bt in range(2):
        if bt == 1: a("s_waitcnt vmcnt(0)")
        if bt == 1:
            gettag("K12_T1")
            a("v_mov_b32 v7, 1")
            a(f"v_mov_b32 v15, {CNT}")
            a("s_mov_b64 exec, 1")
            a("ds_add_rtn_u32 v7, v15, v7")
            a("s_waitcnt lgkmcnt(0)")
            a("v_readfirstlane_b32 s7, v7")
            a("s_cmp_lg_u32 s7, 7")
            a("s_cbranch_scc1 K12_NOSIG1")
            a("v_mov_b32 v7, s68")
            a("s_lshl_b32 s7, s3, 7")
            a(f"s_add_u32 s7, s7, {hex(WS_FL)}")
            a("v_mov_b32 v15, s7")
            a("global_store_dword v15, v7, s[64:65] sc1")
            a.label("K12_NOSIG1")
            a("s_mov_b64 exec, -1")
        build(bt)
        for m in pend: a(m)
        pend = []
        a("s_waitcnt lgkmcnt(0)")
        if bt == 0:
            a("s_barrier")
            a("v_bfe_u32 v8, v2, 2, 2")
            a("v_lshl_add_u32 v8, v4, 3, v8")
            a("s_lshr_b32 s7, s6, 2")
            a("s_lshl_b32 s10, s7, 5")
            a("v_add_u32 v8, s10, v8")
            a("s_movk_i32 s10, 144")
            a("v_mul_lo_u32 v8, v8, s10")
            a("v_and_b32 v9, 3, v2")
            a("v_lshl_add_u32 v8, v9, 3, v8")
            a("s_lshl_b32 s10, s9, 5")
            a(f"s_add_u32 s10, s10, {XTL}")
            a("v_add_u32 v8, s10, v8")
            a("ds_read_b64_tr_b16 v[208:209], v8")
            a(f"ds_read_b64_tr_b16 v[210:211], v8 offset:{4*144}")
            a("s_lshl_b32 s10, s67, 6")
            a("s_lshl_b32 s13, s9, 4")
            a("s_add_u32 s10, s10, s13")
            a("v_add_u32 v9, s10, v3")
            a("v_lshlrev_b32 v9, 12, v9")
            a("v_lshl_add_u32 v9, v4, 4, v9")
            a("s_lshl_b32 s10, s66, 7")
            a("s_lshl_b32 s13, s7, 6")
            a("s_add_u32 s10, s10, s13")
            a(f"s_add_u32 s10, s10, {hex(WS_XT)}")
            a("v_add_u32 v9, s10, v9")
            a("s_waitcnt lgkmcnt(0)")
            a("global_store_dwordx4 v9, v[208:211], s[64:65] sc1")
            a("v_mov_b32 v207, 0")
            a("global_load_dword v207, v207, s[62:63] sc1")
        for x in treads(0): a(x)
        for x in treads(1): a(x)
        for ss in range(2):
            body = []
            st = ss
            for e in range(4):
                idx = 4 * ss + e
                if idx < 6:
                    body += treads(idx + 2)
                    body.append("s_waitcnt lgkmcnt(14)")
                elif idx == 6:
                    body.append("s_waitcnt lgkmcnt(7)")
                else:
                    body.append("s_waitcnt lgkmcnt(0)")
                b = 16 + 14 * (idx % 3)
                P, Q, C0, O0, C1, O1, C2 = [b + 2 * k for k in range(7)]
                body += [f"v_mul_f32 v58, v{P}, v{Q}", f"v_mul_f32 v59, v{P}, v{Q+1}",
                         f"v_mul_f32 v60, v{C0}, v{O0}", f"v_mul_f32 v61, v{C0}, v{O0+1}",
                         f"v_mul_f32 v62, v{C1}, v{O1}", f"v_mul_f32 v63, v{C1}, v{O1+1}",
                         f"v_fma_f32 v58, -v{P+1}, v{Q+1}, v58", f"v_fma_f32 v59, -v{P+1}, v{Q}, -v59",
                         f"v_fma_f32 v60, -v{C0+1}, v{O0+1}, v60", f"v_fma_f32 v61, v{C0+1}, v{O0}, v61",
                         f"v_fma_f32 v62, -v{C1+1}, v{O1+1}, v62", f"v_fma_f32 v63, v{C1+1}, v{O1}, v63"]
                vals = [(58, 59), (60, 61), (62, 63), (C2, C2 + 1)]
                order = [3, 0, 1, 2]
                for X in order:
                    r, i = vals[X]
                    body.append(f"v_perm_b32 v{frag(st,X,0)+e}, v{i}, v{r}, s25")
                    body.append(f"v_and_b32 v{66+2*X}, s24, v{r}")
                    body.append(f"v_and_b32 v{67+2*X}, s24, v{i}")
                for X in order:
                    r, i = vals[X]
                    body.append(f"v_sub_f32 v{66+2*X}, v{r}, v{66+2*X}")
                    body.append(f"v_sub_f32 v{67+2*X}, v{i}, v{67+2*X}")
                for X in order:
                    body.append(f"v_perm_b32 v{frag(st,X,1)+e}, v{67+2*X}, v{66+2*X}, s25")
            if pend:
                body = interleave(body, pend, start=8)
            for x in body: a(x)
            pend = mfmas(st)
            if bt == 1 and ss == 0:
                a("s_lshl_b32 s5, s4, 12")
                a(f"s_mul_i32 s10, s8, {CH}")
                a("v_and_b32 v155, 0xff, v0")
                a("v_lshlrev_b32 v156, 4, v155")
                a("v_lshlrev_b32 v157, 2, v156")
                a("s_add_u32 s16, s64, s5")
                a("s_addc_u32 s17, s65, 0")
                add64(a, 30, 16, WS_HT)
                a(f"s_add_u32 s16, s16, {hex(WS_XT)}")
                a("s_addc_u32 s17, s17, 0")
                a(f"v_mov_b32 v158, {CNT+4}")
                a("s_mov_b32 s15, 0")
                a("s_cmp_lg_u32 s6, 0")
                a("s_cbranch_scc1 K12_CHK")
                a("s_lshr_b32 s14, s4, 6")
                a("s_lshl_b32 s14, s14, 5")
                a("v_and_b32 v15, 31, v2")
                a("v_add_u32 v8, s14, v15")
                a("v_add_u32 v15, 224, v15")
                a("v_cmp_gt_u32 vcc, 32, v2")
                a("v_cndmask_b32 v15, v15, v8, vcc")
                a("v_lshlrev_b32 v15, 7, v15")
                a(f"v_add_u32 v15, {hex(WS_FL)}, v15")
                a("s_mov_b32 s14, 0")
                a.label("K12_POLL")
                a("global_load_dword v7, v15, s[64:65] sc1")
                a("s_waitcnt vmcnt(0)")
                a("v_cmp_ne_u32 vcc, s68, v7")
                a("s_add_u32 s14, s14, 1")
                a("s_cbranch_vccz K12_POLLED")
                a("s_sleep 4")
                a("s_cmp_lt_u32 s14, 10000")
                a("s_cbranch_scc1 K12_POLL")
                a.label("K12_POLLED")
                a("v_mov_b32 v7, 1")
                a("ds_write_b32 v158, v7")
                a("s_branch K12_LD1")
                a.label("K12_CHK")
                a("ds_read_b32 v7, v158")
                a("s_waitcnt lgkmcnt(0)")
                a("v_readfirstlane_b32 s14, v7")
                a("s_cmp_eq_u32 s14, 0")
                a("s_cbranch_scc1 K12_NOLD1")
                a.label("K12_LD1")
                a("global_load_dwordx4 v[196:199], v156, s[16:17] sc1")
                for k in range(4):
                    a(f"global_load_dwordx4 v[{208+4*k}:{211+4*k}], v157, s[64:65] offset:{16*k} sc1")
                a("s_mov_b32 s15, 1")
                a.label("K12_NOLD1")
                a("s_waitcnt lgkmcnt(0)")
    for m in pend: a(m)
    a("s_cmp_lg_u32 s15, 0")
    a("s_cbranch_scc1 K12_LDDONE")
    a("s_mov_b32 s14, 0")
    a.label("K12_SPIN")
    a("ds_read_b32 v7, v158")
    a("s_waitcnt lgkmcnt(0)")
    a("v_readfirstlane_b32 s13, v7")
    a("s_add_u32 s14, s14, 1")
    a("s_cmp_lg_u32 s13, 0")
    a("s_cbranch_scc1 K12_SPUN")
    a("s_sleep 2")
    a("s_cmp_lt_u32 s14, 100000")
    a("s_cbranch_scc1 K12_SPIN")
    a.label("K12_SPUN")
    a("global_load_dwordx4 v[196:199], v156, s[16:17] sc1")
    for k in range(4):
        a(f"global_load_dwordx4 v[{208+4*k}:{211+4*k}], v157, s[64:65] offset:{16*k} sc1")
    a.label("K12_LDDONE")
    stamp()
    a("s_mul_i32 s7, s6, 3072")
    a(f"s_add_u32 s7, s7, {PART}")
    a("v_lshlrev_b32 v9, 2, v2")
    a("v_add_u32 v10, s7, v9")
    for r in range(12):
        a(f"ds_write_b32 v10, v{160+r} offset:{r*256}")
    a("v_mov_b32 v3, v155")
    a("v_mov_b32 v4, v156")
    a(f"s_mul_i32 s7, s8, {LS}")
    a(f"s_add_u32 s7, s7, {LIN}")
    a("v_add_u32 v5, s7, v4")
    a("v_mov_b32 v24, 0"); a("v_mov_b32 v25, 0"); a("v_mov_b32 v26, 0"); a("v_mov_b32 v27, 0")
    a("v_cmp_gt_u32 vcc, 2, v3")
    a("s_and_saveexec_b64 s[28:29], vcc")
    a("ds_write_b128 v5, v[24:27]")
    a("ds_write_b128 v5, v[24:27] offset:4128")
    a("s_mov_b64 exec, s[28:29]")
    def ucalc(xr, sr, out, n):
        for k in range(n):
            t = 44 + 3 * (k & 1)
            a(f"v_lshlrev_b32 v{t}, 16, v{xr+k}")
            a(f"v_and_b32 v{t+1}, s24, v{xr+k}")
            a(f"v_sub_f32 v{t}, v{t}, v{sr+4*k}")
            a(f"v_sub_f32 v{t+1}, v{t+1}, v{sr+2+4*k}")
            a(f"v_cvt_pk_bf16_f32 v{t+2}, v{t}, v{t+1}")
            a(f"v_lshlrev_b32 v{t}, 16, v{t+2}")
            a(f"v_and_b32 v{t+1}, s24, v{t+2}")
            a(f"v_mul_f32 v{t}, v{t}, v{sr+1+4*k}")
            a(f"v_mul_f32 v{t+1}, v{t+1}, v{sr+3+4*k}")
            a(f"v_cvt_pk_bf16_f32 v{out+k}, v{t}, v{t+1}")
    a("s_waitcnt vmcnt(0)")
    ucalc(196, 208, 192, 4)
    a("ds_write_b128 v5, v[192:195] offset:32")
    a("v_lshlrev_b32 v10, 3, v3")
    a("v_sub_u32 v10, 0x7ff, v10")
    for e in range(8):
        a(f"v_subrev_u32 v{44+e}, {e}, v10")
        a(f"v_cvt_f32_u32 v{52+e}, v{44+e}")
        a(f"v_cvt_pk_bf16_f32 v{52+e}, v{52+e}, v{52+e}")
        a(f"v_and_b32 v{52+e}, 0xffff, v{52+e}")
        a(f"v_subrev_u32 v{52+e}, 0x4280, v{52+e}")
        a(f"v_med3_i32 v{52+e}, v{52+e}, v{44+e}, s12")
        a(f"v_lshlrev_b32 v{52+e}, 2, v{52+e}")
        a(f"v_add_u32 v{52+e}, s11, v{52+e}")
    a("s_waitcnt lgkmcnt(0)")
    a("s_barrier")
    stamp()
    a("s_mul_i32 s7, s8, 12288")
    a("s_lshl_b32 s13, s9, 8")
    a("s_add_u32 s7, s7, s13")
    a(f"s_add_u32 s7, s7, {PART}")
    a("v_add_u32 v9, s7, v9")
    for b in range(3):
        for w in range(4):
            a(f"ds_read_b32 v{80+4*b+w}, v9 offset:{w*3072 + b*1024}")
    a("v_add_u32 v6, s10, v4")
    a("v_mov_b32 v24, 0"); a("v_mov_b32 v25, 0"); a("v_mov_b32 v26, 0"); a("v_mov_b32 v27, 0")
    a("v_cmp_gt_u32 vcc, 32, v3")
    a("s_and_saveexec_b64 s[28:29], vcc")
    a("ds_write_b128 v6, v[24:27] offset:4096")
    a("ds_write_b128 v6, v[24:27] offset:8704")
    a("s_mov_b64 exec, s[28:29]")
    a("ds_read_b128 v[16:19], v5")
    a("ds_read_b128 v[20:23], v5 offset:16")
    a("ds_read_b128 v[208:211], v5 offset:4096")
    a("ds_read_b128 v[212:215], v5 offset:4112")
    a("s_waitcnt lgkmcnt(0)")
    for b in range(3):
        a(f"v_add_f32 v{80+4*b}, v{80+4*b}, v{81+4*b}")
        a(f"v_add_f32 v{82+4*b}, v{82+4*b}, v{83+4*b}")
        a(f"v_add_f32 v{80+4*b}, v{80+4*b}, v{82+4*b}")
        a(f"ds_write_b32 v{152+b}, v{80+4*b}")
    def copies(c0, off):
        for k in range(4): a(f"v_mov_b32 v{24+k}, v{c0+k+1}")
        for k in range(4): a(f"v_alignbyte_b32 v{30+k}, v{c0+k+1}, v{c0+k}, 2")
        for k in range(4): a(f"v_alignbyte_b32 v{38+k}, v{c0+k+2}, v{c0+k+1}, 2")
        src = {0: c0, 2: 24, 1: 30, 3: 38}
        for s in range(4):
            a(f"ds_write_b128 v6, v[{src[s]}:{src[s]+3}] offset:{UB + s*CS + OS4[s] + off}")
    copies(16, 0)
    a("s_cmp_lg_u32 s9, 0")
    a("s_cbranch_scc1 K12_NOC2")
    a("v_cmp_gt_u32 vcc, 2, v3")
    a("s_and_saveexec_b64 s[28:29], vcc")
    copies(208, 4096)
    a("s_mov_b64 exec, s[28:29]")
    a.label("K12_NOC2")
    a("s_waitcnt lgkmcnt(0)")
    a("s_barrier")
    stamp()
    for e in range(8):
        a(f"ds_read_b32 v{60+e}, v{52+e}")
    a("v_and_b32 v7, 15, v2")
    a("v_lshrrev_b32 v8, 4, v2")
    a("v_lshlrev_b32 v9, 5, v7")
    a("v_lshlrev_b32 v10, 4, v8")
    a("v_sub_u32 v9, v10, v9")
    a("s_lshl_b32 s7, s9, 6")
    a("s_sub_u32 s14, s10, s7")
    a("s_add_u32 s13, s14, 928")
    a("v_add_u32 v9, s13, v9")
    a("v_add_u32 v11, 1, v7")
    a("v_and_b32 v12, 3, v11")
    a("v_lshrrev_b32 v13, 2, v11")
    a("v_lshl_add_u32 v13, v8, 1, v13")
    a("v_lshlrev_b32 v13, 3, v13")
    a("v_lshlrev_b32 v14, 3, v12")
    a("s_mov_b32 s13, 0xa0704000")
    a("v_lshrrev_b32 v14, v14, s13")
    a("v_and_b32 v14, 0xff, v14")
    a("v_add_u32 v13, v13, v14")
    a(f"s_movk_i32 s13, {CS}")
    a("v_mul_lo_u32 v12, v12, s13")
    a("v_add_u32 v13, v13, v12")
    a(f"s_add_u32 s13, s14, {UB + 448}")
    a("v_add_u32 v10, s13, v13")
    a("s_waitcnt lgkmcnt(0)")
    for k in range(4):
        a(f"v_cvt_pk_bf16_f32 v{68+k}, v{60+2*k}, v{61+2*k}")
        a(f"v_lshlrev_b32 v76, 16, v{68+k}")
        a(f"v_and_b32 v77, s24, v{68+k}")
        a(f"v_sub_f32 v76, v{60+2*k}, v76")
        a(f"v_sub_f32 v77, v{61+2*k}, v77")
        a(f"v_cvt_pk_bf16_f32 v{72+k}, v76, v77")
    a("ds_write_b128 v6, v[68:71]")
    a("ds_write_b128 v6, v[72:75] offset:4608")
    for r in range(32): a(f"v_mov_b32 v{160+r}, 0")
    a("s_waitcnt lgkmcnt(0)")
    a("s_barrier")
    stamp()
    for gi in range(2):
        if gi == 1:
            a("v_subrev_u32 v9, 0x100, v9")
            a("v_subrev_u32 v10, 0x100, v10")
        for k in range(8):
            a(f"ds_read_b64 v[{128+4*k}:{129+4*k}], v10 offset:{512*k}")
            a(f"ds_read_b64 v[{130+4*k}:{131+4*k}], v10 offset:{512*k+8}")
            a(f"ds_read_b128 v[{64+8*k}:{67+8*k}], v9 offset:{512*(7-k)}")
            a(f"ds_read_b128 v[{68+8*k}:{71+8*k}], v9 offset:{512*(7-k)+4608}")
        for k in range(8):
            a(f"s_waitcnt lgkmcnt({min(15, 32-4*(k+1))})")
            pairs = [(k, dl) for dl in range(k + 1)] + [(t, k) for t in range(k)]
            for (t, dl) in pairs:
                if t + dl > 7: continue
                seg = t + dl
                acc = f"v[{160+4*seg}:{163+4*seg}]"
                a(f"v_mfma_f32_16x16x32_bf16 {acc}, v[{64+8*t}:{67+8*t}], v[{128+4*dl}:{131+4*dl}], {acc}")
                a(f"v_mfma_f32_16x16x32_bf16 {acc}, v[{68+8*t}:{71+8*t}], v[{128+4*dl}:{131+4*dl}], {acc}")
    a("s_barrier")
    stamp()
    a("s_lshl_b32 s7, s6, 13")
    a("v_lshlrev_b32 v9, 2, v2")
    a("v_add_u32 v9, s7, v9")
    for r in range(32):
        a(f"ds_write_b32 v9, v{160+r} offset:{256*r}")
    a("v_lshrrev_b32 v9, 5, v3")
    a("v_bfe_u32 v10, v3, 1, 4")
    a("v_and_b32 v11, 3, v10")
    a("v_lshl_add_u32 v9, v9, 2, v11")
    a("v_lshlrev_b32 v9, 8, v9")
    a("v_lshrrev_b32 v10, 2, v10")
    a("v_lshl_add_u32 v9, v10, 6, v9")
    a("v_and_b32 v11, 1, v3")
    a("v_lshl_add_u32 v9, v11, 5, v9")
    a("s_lshl_b32 s7, s8, 15")
    a("v_add_u32 v9, s7, v9")
    a("v_lshlrev_b32 v200, 16, v200")
    for k in range(4):
        a(f"v_lshlrev_b32 v25, 16, v{192+k}")
        a(f"v_and_b32 v26, s24, v{192+k}")
        a(f"v_mul_f32 v25, v25, v200")
        a(f"v_mul_f32 v26, v26, v200")
        a(f"v_cvt_pk_bf16_f32 v27, v25, v26")
        a(f"v_lshlrev_b32 v{208+2*k}, 16, v27")
        a(f"v_and_b32 v{209+2*k}, s24, v27")
        a(f"v_lshlrev_b32 v{216+2*k}, 16, v{196+k}")
        a(f"v_and_b32 v{217+2*k}, s24, v{196+k}")
    a("s_waitcnt lgkmcnt(0)")
    a("s_barrier")
    for w in range(4):
        a(f"ds_read_b128 v[{64+8*w}:{67+8*w}], v9 offset:{8192*w}")
        a(f"ds_read_b128 v[{68+8*w}:{71+8*w}], v9 offset:{8192*w+16}")
    a("s_waitcnt lgkmcnt(0)")
    for e in range(8):
        a(f"v_add_f32 v{64+e}, v{64+e}, v{72+e}")
        a(f"v_add_f32 v{80+e}, v{80+e}, v{88+e}")
        a(f"v_add_f32 v{64+e}, v{64+e}, v{80+e}")
    for k in range(4):
        a(f"v_cvt_pk_bf16_f32 v24, v{64+2*k}, v{65+2*k}")
        a(f"v_lshlrev_b32 v25, 16, v24")
        a(f"v_and_b32 v26, s24, v24")
        a(f"v_add_f32 v25, v25, v{208+2*k}")
        a(f"v_add_f32 v26, v26, v{209+2*k}")
        a(f"v_cvt_pk_bf16_f32 v24, v25, v26")
        a(f"v_lshlrev_b32 v25, 16, v24")
        a(f"v_and_b32 v26, s24, v24")
        a(f"v_add_f32 v25, v25, v{216+2*k}")
        a(f"v_add_f32 v26, v26, v{217+2*k}")
        a(f"v_cvt_pk_bf16_f32 v{32+k}, v25, v26")
    a("global_store_dwordx4 v4, v[32:35], s[30:31] sc1")
    a("s_endpgm")
    a.label("K12_TR")
    a.lines.append("; STAMP0")
    ST = 928
    a("v_mov_b32 v7, 0")
    a(f"v_mov_b32 v15, {CNT}")
    a("ds_write_b32 v15, v7")
    a("s_mov_b32 s3, s2")
    a("s_lshl_b32 s3, s3, 6")
    a("v_lshrrev_b32 v3, 3, v0")
    a("v_and_b32 v4, 7, v0")
    a("v_add_u32 v5, s3, v3")
    a("s_movk_i32 s7, 896")
    a("v_mul_lo_u32 v6, v5, s7")
    a("v_lshl_add_u32 v6, v4, 4, v6")
    a("s_waitcnt lgkmcnt(0)")
    a("s_or_b32 s7, s2, s6")
    a("s_cmp_lg_u32 s7, 0")
    a("s_cbranch_scc1 K12_NOTAG")
    a("s_memrealtime s[68:69]")
    a("s_waitcnt lgkmcnt(0)")
    a("s_or_b32 s68, s68, 1")
    a("v_mov_b32 v7, s68")
    a("v_mov_b32 v15, 0")
    a("global_store_dword v15, v7, s[62:63] sc1")
    a("v_mov_b32 v15, 0x20000")
    a("global_store_dword v15, v7, s[64:65]")
    a.label("K12_NOTAG")
    a("s_barrier")
    for i in range(7):
        a(f"global_load_dwordx4 v[{16+4*i}:{19+4*i}], v6, s[36:37] offset:{128*i}")
    a("s_waitcnt vmcnt(0)")
    stamp()
    a("v_mov_b32 v207, 0")
    a("global_load_dword v207, v207, s[62:63] sc1")
    a.label("K12_TRX")
    for i in range(7):
        for k in range(4):
            a(f"v_lshlrev_b32 v{48+8*i+2*k}, 16, v{16+4*i+k}")
            a(f"v_and_b32 v{49+8*i+2*k}, s24, v{16+4*i+k}")
    a("v_add_f32 v8, v48, v49")
    a("v_add_f32 v9, v50, v51")
    for k in range(2, 28):
        a(f"v_add_f32 v{8+(k&1)}, v{8+(k&1)}, v{48+2*k}")
        a(f"v_add_f32 v{8+(k&1)}, v{8+(k&1)}, v{49+2*k}")
    a("v_add_f32 v8, v8, v9")
    def red8(r):
        a(f"v_add_f32_dpp {r}, {r}, {r} quad_perm:[1,0,3,2] row_mask:0xf bank_mask:0xf")
        a(f"v_add_f32_dpp {r}, {r}, {r} quad_perm:[2,3,0,1] row_mask:0xf bank_mask:0xf")
        a(f"v_add_f32_dpp {r}, {r}, {r} row_half_mirror row_mask:0xf bank_mask:0xf")
    red8('v8')
    a(f"s_mov_b32 s8, {f32bits(1.0/448)}")
    a("v_mul_f32 v8, s8, v8")
    a("v_mov_b32 v10, 0")
    a("v_mov_b32 v11, 0")
    for k in range(56):
        a(f"v_sub_f32 v{12+(k&1)}, v{48+k}, v8")
        a(f"v_fma_f32 v{10+(k&1)}, v{12+(k&1)}, v{12+(k&1)}, v{10+(k&1)}")
    a("v_add_f32 v10, v10, v11")
    red8('v10')
    a("v_mul_f32 v10, s8, v10")
    a("v_cvt_pk_bf16_f32 v11, v8, v10")
    a("v_lshlrev_b32 v8, 16, v11")
    a("v_and_b32 v10, s24, v11")
    a(f"v_add_f32 v10, {f32bits(1e-5)}, v10")
    a("v_cvt_pk_bf16_f32 v10, v10, v10")
    a("v_lshlrev_b32 v10, 16, v10")
    a("v_sqrt_f32 v10, v10")
    a("v_cvt_pk_bf16_f32 v10, v10, v10")
    a("v_lshlrev_b32 v10, 16, v10")
    a("v_rcp_f32 v9, v10")
    a("v_lshlrev_b32 v5, 3, v5")
    a("v_cmp_eq_u32 vcc, 0, v4")
    a("s_and_saveexec_b64 s[28:29], vcc")
    a("global_store_dwordx2 v5, v[8:9], s[64:65] sc1")
    a("s_mov_b64 exec, s[28:29]")
    a("s_waitcnt vmcnt(0)")
    stamp()
    gettag("K12_T2")
    a("v_mov_b32 v7, 1")
    a(f"v_mov_b32 v15, {CNT}")
    a("s_mov_b64 exec, 1")
    a("ds_add_rtn_u32 v7, v15, v7")
    a("s_waitcnt lgkmcnt(0)")
    a("v_readfirstlane_b32 s7, v7")
    a("s_cmp_lg_u32 s7, 7")
    a("s_cbranch_scc1 K12_NOSIG")
    a("v_mov_b32 v7, s68")
    a("s_add_u32 s7, s2, 224")
    a("s_lshl_b32 s7, s7, 7")
    a(f"s_add_u32 s7, s7, {hex(WS_FL)}")
    a("v_mov_b32 v15, s7")
    a("global_store_dword v15, v7, s[64:65] sc1")
    a.label("K12_NOSIG")
    a("s_mov_b64 exec, -1")
    a("s_barrier")
    a("s_mov_b32 s3, s2")
    a("s_lshl_b32 s3, s3, 3")
    a("s_add_u32 s3, s3, s6")
    a("s_mul_i32 s7, s6, 5120")
    a("v_lshrrev_b32 v3, 3, v2")
    a("v_and_b32 v4, 7, v2")
    a("s_movk_i32 s8, 3584")
    a("v_mul_lo_u32 v5, v3, s8")
    a("v_lshl_add_u32 v5, v4, 4, v5")
    a("s_movk_i32 s8, 160")
    a("v_mul_lo_u32 v6, v3, s8")
    a("v_lshl_add_u32 v6, v4, 4, v6")
    a("v_add_u32 v6, s7, v6")
    a("v_lshrrev_b32 v7, 4, v2")
    a("v_bfe_u32 v8, v2, 2, 2")
    a("v_lshl_add_u32 v7, v7, 2, v8")
    a("v_mul_lo_u32 v7, v7, s8")
    a("v_and_b32 v8, 3, v2")
    a("v_lshl_add_u32 v7, v8, 4, v7")
    a("v_add_u32 v7, s7, v7")
    a("v_lshlrev_b32 v8, 4, v2")
    add64(a, 34, 64, WS_W1F)
    a.label("K12_TRL")
    a("s_cmp_ge_u32 s3, 392")
    a("s_cbranch_scc1 K12_TR2")
    a("s_mul_i32 s9, s3, 9363")
    a("s_lshr_b32 s9, s9, 18")
    a("s_mul_i32 s10, s9, 28")
    a("s_sub_u32 s10, s3, s10")
    a("s_mul_i32 s11, s9, 114688")
    a("s_lshl_b32 s12, s10, 7")
    a("s_add_u32 s11, s11, s12")
    a("v_add_u32 v9, s11, v5")
    for i in range(4):
        if i: a(f"v_add_u32 v9, {8*3584}, v9")
        a(f"global_load_dwordx4 v[{16+4*i}:{19+4*i}], v9, s[56:57]")
    for i in range(4):
        a(f"s_waitcnt vmcnt({3-i})")
        a(f"ds_write_b128 v6, v[{16+4*i}:{19+4*i}] offset:{8*160*i}")
    a("s_waitcnt lgkmcnt(0)")
    for fgl in range(2):
        for T in range(2):
            b = 32 + 8 * fgl + 4 * T
            a(f"ds_read_b64_tr_b16 v[{b}:{b+1}], v7 offset:{64*fgl+8*T}")
            a(f"ds_read_b64_tr_b16 v[{b+2}:{b+3}], v7 offset:{64*fgl+8*T+16*160}")
    a("s_mul_i32 s11, s10, 57344")
    a("s_lshl_b32 s12, s9, 11")
    a("s_add_u32 s11, s11, s12")
    a("v_add_u32 v9, s11, v8")
    a("v_add_u32 v10, 28672, v9")
    a("s_waitcnt lgkmcnt(0)")
    a("global_store_dwordx4 v9, v[32:35], s[34:35] sc1")
    a("global_store_dwordx4 v9, v[36:39], s[34:35] offset:1024 sc1")
    a("global_store_dwordx4 v10, v[40:43], s[34:35] sc1")
    a("global_store_dwordx4 v10, v[44:47], s[34:35] offset:1024 sc1")
    a("s_add_u32 s3, s3, 256")
    a("s_branch K12_TRL")
    a.label("K12_TR2")
    a("s_lshl_b32 s3, s2, 3")
    a("s_add_u32 s3, s3, s6")
    a("s_movk_i32 s8, 896")
    a("v_mul_lo_u32 v5, v3, s8")
    a("v_lshl_add_u32 v5, v4, 4, v5")
    a("s_movk_i32 s8, 160")
    a("v_lshrrev_b32 v7, 4, v2")
    a("v_bfe_u32 v9, v2, 2, 2")
    a("v_lshl_add_u32 v7, v7, 3, v9")
    a("v_mul_lo_u32 v7, v7, s8")
    a("v_and_b32 v9, 3, v2")
    a("v_lshl_add_u32 v7, v9, 3, v7")
    a("v_add_u32 v7, s7, v7")
    add64(a, 34, 64, WS_W2F)
    a.label("K12_TRL2")
    a("s_cmp_ge_u32 s3, 392")
    a("s_cbranch_scc1 K12_END")
    a("s_mul_i32 s9, s3, 9363")
    a("s_lshr_b32 s9, s9, 16")
    a("s_mul_i32 s10, s9, 7")
    a("s_sub_u32 s10, s3, s10")
    a("s_mul_i32 s11, s9, 28672")
    a("s_lshl_b32 s12, s10, 7")
    a("s_add_u32 s11, s11, s12")
    a("v_add_u32 v9, s11, v5")
    for i in range(4):
        if i: a(f"v_add_u32 v9, {8*896}, v9")
        a(f"global_load_dwordx4 v[{16+4*i}:{19+4*i}], v9, s[58:59]")
    for i in range(4):
        a(f"s_waitcnt vmcnt({3-i})")
        a(f"ds_write_b128 v6, v[{16+4*i}:{19+4*i}] offset:{8*160*i}")
    a("s_waitcnt lgkmcnt(0)")
    for T in range(4):
        b = 32 + 4 * T
        a(f"ds_read_b64_tr_b16 v[{b}:{b+1}], v7 offset:{32*T}")
        a(f"ds_read_b64_tr_b16 v[{b+2}:{b+3}], v7 offset:{32*T+4*160}")
    a("s_mul_i32 s11, s10, 229376")
    a("s_lshl_b32 s12, s9, 12")
    a("s_add_u32 s11, s11, s12")
    a("v_add_u32 v9, s11, v8")
    a("s_waitcnt lgkmcnt(0)")
    for T in range(4):
        a(f"global_store_dwordx4 v9, v[{32+4*T}:{35+4*T}], s[34:35] offset:{1024*T} sc1")
    a("s_add_u32 s3, s3, 256")
    a("s_branch K12_TRL2")
    a.label("K12_END")
    a("s_endpgm")
    return a.finalize(), 232, XTL + 9216

if __name__ == '__main__':
    ks = [('k12_kernel', gen_k12, 256, 512), ('k3_kernel', gen_k3, 256, 512), ('k4_kernel', gen_k4, 224, 512)]
    open('cdna_kernels/' + NAME + '.s', 'w').write(build(ks))
```

```python
from gen12 import *

WS_TAG = 0x20000
WS_FL2 = 0x30000
def gen_k34():
    a = Asm()
    PART = 0; FIN = 4096; AT = 4608
    RS = 272; WSZ = 64 * RS
    CNT2 = 8 * WSZ
    stamp = lambda: a.lines.append("; STAMP")
    a("s_cmp_ge_u32 s2, 256")
    a("s_cbranch_scc1 K34_END")
    a("s_load_dwordx2 s[32:33], s[0:1], 112")
    a("s_cmp_ge_u32 s2, 224")
    a("s_cbranch_scc1 K34_PF")
    a("s_load_dwordx2 s[30:31], s[0:1], 96")
    a("v_lshrrev_b32 v1, 6, v0")
    a("v_readfirstlane_b32 s6, v1")
    a("v_and_b32 v2, 63, v0")
    tile_ids(a)
    a("s_lshl_b32 s5, s3, 7")
    a("v_and_b32 v3, 7, v0")
    a("v_lshrrev_b32 v4, 3, v0")
    a("v_lshlrev_b32 v5, 4, v3")
    a("v_add_u32 v5, s5, v5")
    a("v_lshl_add_u32 v6, v4, 12, v5")
    a("v_lshlrev_b32 v7, 1, v0")
    a("v_add_u32 v7, s5, v7")
    a("v_mov_b32 v8, 0")
    a(f"v_mov_b32 v9, {CNT2}")
    a("ds_write_b32 v9, v8")
    a("s_waitcnt lgkmcnt(0)")
    a(f"s_add_u32 s12, s32, {hex(WS_HT)}")
    a("s_addc_u32 s13, s33, 0")
    a("s_mov_b32 s14, 0x1c0000")
    a("s_mov_b32 s15, 0x00020000")
    a(f"s_add_u32 s16, s32, {hex(WS_W1F)}")
    a("s_addc_u32 s17, s33, 0")
    a("s_mov_b32 s18, 0x188000")
    a("s_mov_b32 s19, 0x00020000")
    a(f"s_load_dword s60, s[32:33], {hex(WS_TAG)}")
    for i in range(7):
        a(f"s_mov_b32 s{20+i}, {hex(i*262144)}")
    for i in range(7):
        a(f"buffer_load_dwordx4 v[{16+4*i}:{19+4*i}], v6, s[12:15], s{20+i} offen")
    a("buffer_load_dwordx4 v[44:47], v5, s[12:15], 0 offen")
    a("buffer_load_ushort v8, v7, s[12:15], 0 offen")
    a("s_lshl_b32 s7, s4, 3")
    a("s_add_u32 s7, s7, s6")
    a("s_mul_i32 s8, s7, 28672")
    a("v_lshlrev_b32 v9, 4, v2")
    a("v_add_u32 v10, s8, v9")
    for i in range(8):
        a(f"s_mov_b32 s{34+i}, {i*4096}")
    wl = [f"buffer_load_dwordx4 v[{128+4*k}:{131+4*k}], v10, s[16:19], s{34+k//4} offen offset:{(k%4)*1024}" for k in range(28)]
    a("s_mov_b32 s44, 0xffff0000")
    a("s_waitcnt vmcnt(1)")
    stamp()
    for k in range(4):
        a(f"v_lshlrev_b32 v{104+2*k}, 16, v{44+k}")
        a(f"v_and_b32 v{105+2*k}, s44, v{44+k}")
    for r in range(16): a(f"v_mov_b32 v{112+r}, 0")
    for i in range(7):
        for k in range(4):
            a(f"v_lshlrev_b32 v{48+8*i+2*k}, 16, v{16+4*i+k}")
            a(f"v_and_b32 v{49+8*i+2*k}, s44, v{16+4*i+k}")
        for r in range(8):
            a(f"v_sub_f32 v{12+(r&3)}, v{48+8*i+r}, v{104+r}")
            a(f"v_add_f32 v{112+r}, v{112+r}, v{12+(r&3)}")
            a(f"v_fma_f32 v{120+r}, v{12+(r&3)}, v{12+(r&3)}, v{120+r}")
        a(wl[2*i]); a(wl[2*i+1])
    for k in range(8): a(f"v_permlane32_swap_b32 v{112+k}, v{120+k}")
    for k in range(8): a(f"v_add_f32 v{112+k}, v{112+k}, v{120+k}")
    for k in range(4): a(f"v_permlane16_swap_b32 v{112+k}, v{116+k}")
    for k in range(4): a(f"v_add_f32 v{112+k}, v{112+k}, v{116+k}")
    for k in range(4): a(f"v_add_f32_dpp v{112+k}, v{112+k}, v{112+k} row_ror:8 row_mask:0xf bank_mask:0xf")
    a("v_lshrrev_b32 v12, 5, v2")
    a("v_bfe_u32 v13, v2, 4, 1")
    a("v_lshlrev_b32 v14, 5, v3")
    a("v_lshl_add_u32 v14, v13, 4, v14")
    a("v_lshl_add_u32 v14, v12, 8, v14")
    a("s_lshl_b32 s9, s6, 9")
    a("v_add_u32 v14, s9, v14")
    a(f"ds_write_b128 v14, v[112:115] offset:{PART}")
    a("s_waitcnt lgkmcnt(0)")
    a("s_barrier")
    stamp()
    a("s_cmp_lg_u32 s6, 0")
    a("s_cbranch_scc1 K34_SKIP")
    a("v_lshlrev_b32 v12, 2, v2")
    for w in range(8):
        a(f"ds_read_b32 v{112+w}, v12 offset:{PART + 512*w}")
        a(f"ds_read_b32 v{120+w}, v12 offset:{PART + 512*w + 256}")
    a("s_waitcnt lgkmcnt(0)")
    for st in (112, 120):
        a(f"v_add_f32 v{st}, v{st}, v{st+1}")
        a(f"v_add_f32 v{st+2}, v{st+2}, v{st+3}")
        a(f"v_add_f32 v{st+4}, v{st+4}, v{st+5}")
        a(f"v_add_f32 v{st+6}, v{st+6}, v{st+7}")
        a(f"v_add_f32 v{st}, v{st}, v{st+2}")
        a(f"v_add_f32 v{st+4}, v{st+4}, v{st+6}")
        a(f"v_add_f32 v{st}, v{st}, v{st+4}")
    a(f"s_mov_b32 s9, {f32bits(1.0/448)}")
    a("v_mul_f32 v112, s9, v112")
    a("v_mul_f32 v120, s9, v120")
    a("v_fma_f32 v120, -v112, v112, v120")
    a("v_max_f32 v120, 0, v120")
    a("s_waitcnt vmcnt(14)")
    a("v_lshlrev_b32 v8, 16, v8")
    a("v_add_f32 v112, v8, v112")
    a("v_cvt_pk_bf16_f32 v13, v112, v120")
    a("v_lshlrev_b32 v112, 16, v13")
    a("v_and_b32 v120, s44, v13")
    a(f"v_add_f32 v120, {f32bits(1e-5)}, v120")
    a("v_cvt_pk_bf16_f32 v120, v120, v120")
    a("v_lshlrev_b32 v120, 16, v120")
    a("v_sqrt_f32 v120, v120")
    a("v_cvt_pk_bf16_f32 v120, v120, v120")
    a("v_lshlrev_b32 v120, 16, v120")
    a("v_rcp_f32 v120, v120")
    a(f"ds_write_b32 v12, v112 offset:{FIN}")
    a(f"ds_write_b32 v12, v120 offset:{FIN+256}")
    a("s_waitcnt lgkmcnt(0)")
    a.label("K34_SKIP")
    a("s_barrier")
    a("v_lshlrev_b32 v12, 5, v3")
    a(f"ds_read_b128 v[104:107], v12 offset:{FIN}")
    a(f"ds_read_b128 v[108:111], v12 offset:{FIN+16}")
    a(f"ds_read_b128 v[112:115], v12 offset:{FIN+256}")
    a(f"ds_read_b128 v[116:119], v12 offset:{FIN+272}")
    a("s_movk_i32 s9, 160")
    a("v_mul_lo_u32 v13, v4, s9")
    a("v_lshl_add_u32 v13, v3, 4, v13")
    a(f"v_add_u32 v13, {AT}, v13")
    a("s_waitcnt lgkmcnt(0)")
    for i in range(7):
        for k in range(4):
            x0 = 48 + 8 * i + 2 * k; x1 = x0 + 1
            a(f"v_sub_f32 v{x0}, v{x0}, v{104+2*k}")
            a(f"v_sub_f32 v{x1}, v{x1}, v{105+2*k}")
            a(f"v_cvt_pk_bf16_f32 v{12+2*(k&1)}, v{x0}, v{x1}")
            a(f"v_lshlrev_b32 v{x0}, 16, v{12+2*(k&1)}")
            a(f"v_and_b32 v{x1}, s44, v{12+2*(k&1)}")
            a(f"v_mul_f32 v{x0}, v{x0}, v{112+2*k}")
            a(f"v_mul_f32 v{x1}, v{x1}, v{113+2*k}")
            a(f"v_cvt_pk_bf16_f32 v{16+4*i+k}, v{x0}, v{x1}")
        a(f"ds_write_b128 v13, v[{16+4*i}:{19+4*i}] offset:{64*160*i}")
        a(wl[14+2*i]); a(wl[15+2*i])
    a("v_lshrrev_b32 v4, 4, v2")
    a("v_bfe_u32 v5, v2, 2, 2")
    a("v_lshl_add_u32 v4, v4, 2, v5")
    a("v_mul_lo_u32 v4, v4, s9")
    a("v_and_b32 v5, 3, v2")
    a("v_lshl_add_u32 v4, v5, 3, v4")
    a(f"v_add_u32 v4, {AT}, v4")
    a("v_add_u32 v5, 35840, v4")
    for r in range(32): a(f"v_mov_b32 v{96+r}, 0")
    a(f"s_add_u32 s48, s32, {hex(WS_W2F)}")
    a("s_addc_u32 s49, s33, 0")
    a("s_mov_b32 s50, 0x188000")
    a("s_mov_b32 s51, 0x00020000")
    a("s_mul_i32 s8, s4, 229376")
    a("s_mul_i32 s10, s6, 28672")
    a("s_add_u32 s8, s8, s10")
    a("v_add_u32 v11, s8, v9")
    a("s_waitcnt lgkmcnt(0)")
    a("s_barrier")
    stamp()
    def trreads(s):
        b = 16 + 16 * (s & 1)
        base = 'v4' if s < 7 else 'v5'; so = (s % 7) * 5120
        out = []
        for mt in range(4):
            out.append(f"ds_read_b64_tr_b16 v[{b+4*mt}:{b+4*mt+1}], {base} offset:{so+32*mt}")
            out.append(f"ds_read_b64_tr_b16 v[{b+4*mt+2}:{b+4*mt+3}], {base} offset:{so+32*mt+2560}")
        return out
    w2l = [f"buffer_load_dwordx4 v[{128+4*k}:{131+4*k}], v11, s[48:51], s{34+k//4} offen offset:{(k%4)*1024}" for k in range(28)]
    NI = 10
    for x in trreads(0): a(x)
    for s in range(14):
        if s < 13:
            for x in trreads(s + 1): a(x)
        nW2 = 2 * min(max(0, s - 1), NI)
        a(f"s_waitcnt vmcnt({26-2*s + nW2}) lgkmcnt({8 if s < 13 else 0})")
        b = 16 + 16 * (s & 1)
        for mt in range(4):
            for T in range(2):
                acc = f"v[{96+16*T+4*mt}:{99+16*T+4*mt}]"
                w = 128 + 8 * s + 4 * T
                a(f"v_mfma_f32_16x16x32_bf16 {acc}, v[{w}:{w+3}], v[{b+4*mt}:{b+4*mt+3}], {acc}")
        if 1 <= s <= NI:
            a(w2l[2*(s-1)]); a(w2l[2*(s-1)+1])
    stamp()
    a("s_mul_i32 s8, s3, 229376")
    a("s_lshl_b32 s9, s7, 10")
    a("s_add_u32 s8, s8, s9")
    a("v_add_u32 v10, s8, v9")
    add64(a, 46, 32, WS_H1F)
    for mt in range(4):
        for T in range(2):
            for r in range(4):
                a(f"v_max_f32 v{96+16*T+4*mt+r}, 0, v{96+16*T+4*mt+r}")
        o = 48 + 4 * mt
        a(f"v_cvt_pk_bf16_f32 v{o}, v{96+4*mt}, v{97+4*mt}")
        a(f"v_cvt_pk_bf16_f32 v{o+1}, v{98+4*mt}, v{99+4*mt}")
        a(f"v_cvt_pk_bf16_f32 v{o+2}, v{112+4*mt}, v{113+4*mt}")
        a(f"v_cvt_pk_bf16_f32 v{o+3}, v{114+4*mt}, v{115+4*mt}")
        if mt: a(f"v_add_u32 v10, 57344, v10")
        a(f"global_store_dwordx4 v10, v[{o}:{o+3}], s[46:47] sc1")
    a("v_lshrrev_b32 v3, 3, v0")
    a("v_and_b32 v4, 7, v0")
    a("s_lshl_b32 s8, s4, 18")
    a("s_lshl_b32 s9, s3, 7")
    a("s_add_u32 s8, s8, s9")
    a("v_lshlrev_b32 v5, 15, v4")
    a("v_lshl_add_u32 v5, v3, 1, v5")
    a("v_add_u32 v5, s8, v5")
    a("s_waitcnt vmcnt(0) lgkmcnt(0)")
    a("v_mov_b32 v7, 1")
    a(f"v_mov_b32 v15, {CNT2}")
    a("s_mov_b64 exec, 1")
    a("ds_add_rtn_u32 v7, v15, v7")
    a("s_waitcnt lgkmcnt(0)")
    a("v_readfirstlane_b32 s8, v7")
    a("s_cmp_lg_u32 s8, 7")
    a("s_cbranch_scc1 K34_NOSIG")
    a("v_mov_b32 v7, s60")
    a("s_lshl_b32 s8, s2, 7")
    a(f"s_add_u32 s8, s8, {hex(WS_FL2)}")
    a("v_mov_b32 v15, s8")
    a("global_store_dword v15, v7, s[32:33] sc1")
    a.label("K34_NOSIG")
    a("s_mov_b64 exec, -1")
    for r in range(64): a(f"v_mov_b32 v{16+r}, 0")
    a(f"s_add_u32 s52, s32, {hex(WS_H1F)}")
    a("s_addc_u32 s53, s33, 0")
    a("s_mov_b32 s54, 0x700000")
    a("s_mov_b32 s55, 0x00020000")
    a("s_mul_i32 s8, s3, 229376")
    a("s_mul_i32 s9, s6, 7168")
    a("s_add_u32 s8, s8, s9")
    a("v_add_u32 v10, s8, v9")
    for mt in range(4):
        a(f"s_mov_b32 s{20+mt}, {mt*57344}")
        a(f"s_mov_b32 s{24+mt}, {mt*57344+4096}")
    a("s_cmp_eq_u32 s6, 0")
    a("s_cbranch_scc1 K34_DOPOLL")
    for x in w2l[2*NI:]: a(x)
    for e in range(8):
        a(f"buffer_load_ushort v{240+e}, v5, s[12:15], s{34+e} offen")
    a("s_branch K34_NOPOLL")
    a.label("K34_DOPOLL")
    a("s_and_b32 s8, s2, 31")
    a("v_min_u32 v15, 6, v2")
    a("v_lshlrev_b32 v15, 5, v15")
    a("v_add_u32 v15, s8, v15")
    a("v_lshlrev_b32 v15, 7, v15")
    a(f"v_add_u32 v15, {hex(WS_FL2)}, v15")
    a("s_mov_b32 s8, 0")
    a.label("K34_POLL")
    a("global_load_dword v7, v15, s[32:33] sc1")
    a("s_waitcnt vmcnt(0)")
    a("v_cmp_ne_u32 vcc, s60, v7")
    a("s_add_u32 s8, s8, 1")
    a("s_cbranch_vccz K34_POLLED")
    a("s_sleep 2")
    a("s_cmp_lt_u32 s8, 20000")
    a("s_cbranch_scc1 K34_POLL")
    a.label("K34_POLLED")
    for x in w2l[2*NI:]: a(x)
    for e in range(8):
        a(f"buffer_load_ushort v{240+e}, v5, s[12:15], s{34+e} offen")
    a.label("K34_NOPOLL")
    a("s_barrier")
    stamp()
    NB = 3
    def loads(ks):
        b = 80 + 16 * (ks % NB)
        return [f"buffer_load_dwordx4 v[{b+4*mt}:{b+4*mt+3}], v10, s[52:55], s{(20 if ks < 4 else 24)+mt} offen offset:{(ks%4)*1024} sc1" for mt in range(4)]
    for ks in range(NB):
        for x in loads(ks): a(x)
    for ks in range(7):
        rem = min(7, ks + NB) - (ks + 1)
        a(f"s_waitcnt vmcnt({4*rem})")
        if ks == 0: stamp()
        b = 80 + 16 * (ks % NB)
        for T in range(4):
            for mt in range(4):
                acc = f"v[{16+16*T+4*mt}:{19+16*T+4*mt}]"
                w = 128 + 16 * ks + 4 * T
                a(f"v_mfma_f32_16x16x32_bf16 {acc}, v[{w}:{w+3}], v[{b+4*mt}:{b+4*mt+3}], {acc}")
        if ks + NB < 7:
            for x in loads(ks + NB): a(x)
    stamp()
    a("v_and_b32 v6, 15, v2")
    a("v_lshrrev_b32 v7, 4, v2")
    a(f"s_movk_i32 s8, {RS}")
    a("v_mul_lo_u32 v6, v6, s8")
    a("v_lshl_add_u32 v6, v7, 4, v6")
    a(f"s_mul_i32 s9, s6, {WSZ}")
    a("v_add_u32 v6, s9, v6")
    for T in range(4):
        for mt in range(4):
            a(f"ds_write_b128 v6, v[{16+16*T+4*mt}:{19+16*T+4*mt}] offset:{mt*16*RS + 64*T}")
    a("s_waitcnt lgkmcnt(0)")
    a("s_barrier")
    stamp()
    a("v_mul_lo_u32 v6, v3, s8")
    a("v_lshl_add_u32 v6, v4, 5, v6")
    a(f"v_add_u32 v7, {4*WSZ}, v6")
    for w in range(8):
        base = 'v6' if w < 4 else 'v7'
        a(f"ds_read_b128 v[{80+8*w}:{83+8*w}], {base} offset:{(w%4)*WSZ}")
        a(f"ds_read_b128 v[{84+8*w}:{87+8*w}], {base} offset:{(w%4)*WSZ+16}")
    a("s_waitcnt lgkmcnt(0)")
    for e in range(8):
        a(f"v_add_f32 v{80+e}, v{80+e}, v{88+e}")
        a(f"v_add_f32 v{96+e}, v{96+e}, v{104+e}")
        a(f"v_add_f32 v{112+e}, v{112+e}, v{120+e}")
        a(f"v_add_f32 v{128+e}, v{128+e}, v{136+e}")
        a(f"v_add_f32 v{80+e}, v{80+e}, v{96+e}")
        a(f"v_add_f32 v{112+e}, v{112+e}, v{128+e}")
        a(f"v_add_f32 v{80+e}, v{80+e}, v{112+e}")
    for k in range(4):
        a(f"v_cvt_pk_bf16_f32 v12, v{80+2*k}, v{81+2*k}")
        a(f"v_lshlrev_b32 v13, 16, v12")
        a(f"v_and_b32 v14, s44, v12")
        a(f"v_lshlrev_b32 v{240+2*k}, 16, v{240+2*k}")
        a(f"v_lshlrev_b32 v{241+2*k}, 16, v{241+2*k}")
        a(f"v_add_f32 v13, v13, v{240+2*k}")
        a(f"v_add_f32 v14, v14, v{241+2*k}")
        a(f"v_cvt_pk_bf16_f32 v{16+k}, v13, v14")
    a("s_lshl_b32 s8, s3, 6")
    a("v_add_u32 v5, s8, v3")
    a("s_movk_i32 s9, 896")
    a("v_mul_lo_u32 v5, v5, s9")
    a("v_lshl_add_u32 v5, v4, 4, v5")
    a("s_lshl_b32 s8, s4, 7")
    a("v_add_u32 v5, s8, v5")
    a("global_store_dwordx4 v5, v[16:19], s[30:31]")
    a("s_endpgm")
    a.label("K34_PF")
    a("s_sub_u32 s3, s2, 224")
    a("s_lshr_b32 s3, s3, 3")
    a("s_mul_i32 s3, s3, 401408")
    a("v_lshlrev_b32 v1, 4, v0")
    a("v_add_u32 v1, s3, v1")
    a("s_waitcnt lgkmcnt(0)")
    a(f"s_add_u32 s12, s32, {hex(WS_W2F)}")
    a("s_addc_u32 s13, s33, 0")
    a("s_mov_b32 s14, 0x188000")
    a("s_mov_b32 s15, 0x00020000")
    a("s_mov_b32 s4, 0")
    a.label("K34_PFL")
    for k in range(7):
        a(f"buffer_load_dwordx4 v[{8+4*k}:{11+4*k}], v1, s[12:15], s4 offen")
        a("s_add_u32 s4, s4, 8192")
    a("s_waitcnt vmcnt(0)")
    a("s_cmp_lt_u32 s4, 401408")
    a("s_cbranch_scc1 K34_PFL")
    a.label("K34_END")
    a("s_endpgm")
    return a.finalize(), 248, CNT2 + 64

if __name__ == '__main__':
    ks = [('k12_kernel', gen_k12, 256, 512), ('k34_kernel', gen_k34, 256, 512)]
    open('cdna_kernels/' + NAME + '.s', 'w').write(build(ks))
```

```python
from gen3 import *

PFN = 2
WS_ST = 0x0
WS_FL = 0x10000
def gen_k12():
    a = Asm()
    CH = 26624; UB = 9216; CS = 4352
    OS4 = [0, 64, 112, 160]
    TS = 264
    LIN = 92160; LS = 4224
    PART = 115200; TT = 139776; CNT = 147968; XTL = 148096
    stamp = lambda: a.lines.append("; STAMP")
    def gettag(lbl):
        a("v_readfirstlane_b32 s68, v207")
        a("s_cmp_lg_u32 s68, 0")
        a(f"s_cbranch_scc1 {lbl}_OK")
        a("s_mov_b32 s69, 0")
        a.label(f"{lbl}_L")
        a("s_sleep 4")
        a("v_mov_b32 v207, 0")
        a("global_load_dword v207, v207, s[62:63] sc1")
        a("s_waitcnt vmcnt(0)")
        a("v_readfirstlane_b32 s68, v207")
        a("s_add_u32 s69, s69, 1")
        a("s_cmp_lg_u32 s68, 0")
        a(f"s_cbranch_scc1 {lbl}_OK")
        a("s_cmp_lt_u32 s69, 20000")
        a(f"s_cbranch_scc1 {lbl}_L")
        a.label(f"{lbl}_OK")
    a("s_cmp_ge_u32 s2, 256")
    a("s_cbranch_scc1 K12_END")
    a("s_load_dwordx16 s[36:51], s[0:1], 0")
    a("s_load_dwordx8 s[52:59], s[0:1], 64")
    a("s_load_dwordx4 s[60:63], s[0:1], 96")
    a("s_load_dwordx2 s[64:65], s[0:1], 112")
    a("v_lshrrev_b32 v1, 6, v0")
    a("v_readfirstlane_b32 s6, v1")
    a("v_and_b32 v2, 63, v0")
    a("s_lshr_b32 s8, s6, 2")
    a("s_and_b32 s9, s6, 3")
    a("s_sub_u32 s4, s2, 32")
    a("s_lshl_b32 s4, s4, 1")
    a(f"s_mov_b32 s20, {L2E}")
    a(f"s_mov_b32 s21, {L2E_LO}")
    a(f"s_mov_b32 s22, {LN2}")
    a(f"s_mov_b32 s23, {INV2PI}")
    a("s_mov_b32 s24, 0xffff0000")
    a("s_mov_b32 s25, 0x07060302")
    a("s_cmp_lt_u32 s2, 32")
    a("s_cbranch_scc1 K12_TR")
    a("s_add_u32 s4, s4, s8")
    a("v_and_b32 v5, 31, v2")
    a("v_lshlrev_b32 v5, 1, v5")
    a("s_lshl_b32 s7, s4, 9")
    a("s_lshl_b32 s10, s9, 7")
    a("s_add_u32 s7, s7, s10")
    a("v_add_u32 v5, s7, v5")
    a("s_lshl_b32 s7, s4, 1")
    a("v_mov_b32 v6, s7")
    a("s_sub_u32 s3, s2, 32")
    a("s_and_b32 s66, s3, 31")
    a("s_lshr_b32 s67, s3, 5")
    a("v_lshrrev_b32 v7, 3, v0")
    a("v_and_b32 v8, 7, v0")
    a("s_lshl_b32 s7, s66, 6")
    a("v_add_u32 v9, s7, v7")
    a("s_movk_i32 s7, 896")
    a("v_mul_lo_u32 v9, v9, s7")
    a("v_lshl_add_u32 v9, v8, 4, v9")
    a("s_lshl_b32 s7, s67, 7")
    a("v_add_u32 v9, s7, v9")
    a("s_movk_i32 s7, 144")
    a("v_mul_lo_u32 v206, v7, s7")
    a("v_lshl_add_u32 v206, v8, 4, v206")
    a(f"v_add_u32 v206, {XTL}, v206")
    a("v_mov_b32 v7, 0")
    a(f"v_mov_b32 v15, {CNT}")
    a("ds_write_b32 v15, v7")
    a("ds_write_b32 v15, v7 offset:4")
    a("s_waitcnt lgkmcnt(0)")
    a("global_load_dwordx4 v[208:211], v9, s[36:37]")
    a("global_load_ushort v14, v6, s[50:51]")
    for bt in range(2):
        for i, sp in enumerate((38, 40, 42, 44, 46, 48)):
            a(f"global_load_ushort v{176+8*bt+i}, v5, s[{sp}:{sp+1}] offset:{64*bt}")
    a("global_load_ushort v200, v6, s[52:53]")
    a("v_cmp_lt_u32 s[26:27], 31, v2")
    a("v_mov_b32 v8, 1.0")
    a(f"v_mov_b32 v9, {f32bits(128.0)}")
    a("v_cndmask_b32 v202, v8, v9, s[26:27]")
    a(f"v_mov_b32 v8, {f32bits(8.0)}")
    a(f"v_mov_b32 v9, {f32bits(1024.0)}")
    a("v_cndmask_b32 v203, v8, v9, s[26:27]")
    a("v_and_b32 v8, 31, v2")
    a(f"s_movk_i32 s7, {TS}")
    a("v_mul_lo_u32 v8, v8, s7")
    a(f"s_mul_i32 s7, s6, {32*TS}")
    a("v_add_u32 v204, s7, v8")
    a("v_lshrrev_b32 v8, 5, v2")
    a("v_lshl_add_u32 v205, v8, 6, v204")
    a("v_and_b32 v3, 15, v2")
    a("v_lshrrev_b32 v4, 4, v2")
    def bases(row, o0, o1, o2, t0, t1):
        a(f"v_and_b32 {t0}, 7, {row}")
        a(f"v_lshrrev_b32 {t1}, 3, {row}")
        a(f"v_lshl_add_u32 {o0}, {t1}, 7, {t0}")
        a(f"v_and_b32 {t0}, 3, {row}")
        a(f"v_lshlrev_b32 {t0}, 1, {t0}")
        a(f"v_bfe_u32 {t1}, {row}, 2, 1")
        a(f"v_lshl_add_u32 {t0}, {t1}, 7, {t0}")
        a(f"v_add_u32 {t0}, 0x100, {t0}")
        a(f"v_and_b32 {t1}, 1, {row}")
        a(f"v_lshlrev_b32 {t1}, 2, {t1}")
        a(f"v_bfe_u32 {o2}, {row}, 1, 2")
        a(f"v_lshl_add_u32 {t1}, {o2}, 7, {t1}")
        a(f"v_add_u32 {t1}, 0x200, {t1}")
        a(f"v_cmp_gt_u32 vcc, 8, {row}")
        a(f"v_cndmask_b32 {o1}, {t1}, {t0}, vcc")
        a(f"v_lshlrev_b32 {o2}, 7, {row}")
        a(f"v_add_u32 {o2}, 0x400, {o2}")
    bases('v3', 'v6', 'v12', 'v8', 'v9', 'v10')
    a(f"s_movk_i32 s10, {8*TS}")
    a("v_mul_lo_u32 v9, v4, s10")
    a("v_add_u32 v9, s7, v9")
    a("v_lshrrev_b32 v10, 2, v3")
    a("v_add_u32 v10, 25, v10")
    a("v_lshl_add_u32 v144, v10, 3, v9")
    a("v_and_b32 v10, 3, v3")
    a("v_add_u32 v10, 29, v10")
    a("v_lshl_add_u32 v145, v10, 3, v9")
    for (b, rc, ro) in (('v6', 146, 147), ('v12', 148, 149)):
        a(f"v_lshrrev_b32 v10, 7, {b}")
        a("v_add_u32 v10, 8, v10")
        a(f"v_lshl_add_u32 v{rc}, v10, 3, v9")
        a(f"v_and_b32 v10, 7, {b}")
        a(f"v_lshl_add_u32 v{ro}, v10, 3, v9")
    a("v_lshrrev_b32 v10, 7, v8")
    a("v_min_u32 v10, 16, v10")
    a("v_add_u32 v10, 8, v10")
    a("v_lshl_add_u32 v150, v10, 3, v9")
    for r in range(12): a(f"v_mov_b32 v{160+r}, 0")
    a("v_lshlrev_b32 v10, 2, v4")
    a("v_add_u32 v10, s9, v10")
    bases('v10', 'v44', 'v45', 'v46', 'v11', 'v13')
    a("s_lshl_b32 s11, s8, 12")
    a(f"s_add_u32 s11, s11, {TT}")
    a("s_movk_i32 s12, 0x7f")
    a("s_movk_i32 s13, 0x800")
    for b in range(3):
        a(f"v_lshl_add_u32 v{44+b}, v3, 3, v{44+b}")
        a(f"v_cvt_f32_u32 v{48+b}, v{44+b}")
        a(f"v_lshrrev_b32 v{48+b}, 16, v{48+b}")
        a(f"v_subrev_u32 v{48+b}, 0x4280, v{48+b}")
        a(f"v_med3_i32 v{48+b}, v{48+b}, v{44+b}, s12")
        a(f"v_mov_b32 v52, 1000")
        a(f"v_cmp_ge_u32 vcc, s13, v{44+b}")
        a(f"v_cndmask_b32 v{48+b}, v52, v{48+b}, vcc")
        a(f"v_lshlrev_b32 v{48+b}, 2, v{48+b}")
        a(f"v_add_u32 v{152+b}, s11, v{48+b}")
    a("s_waitcnt vmcnt(13)")
    a("v_lshlrev_b32 v14, 16, v14")
    a("v_mul_f32 v15, s20, v14")
    a("v_fma_f32 v16, v14, s20, -v15")
    a("v_fma_f32 v16, v14, s21, v16")
    a("v_exp_f32 v17, v15")
    a("v_mul_f32 v16, s22, v16")
    a("v_fma_f32 v17, v17, v16, v17")
    a("v_cvt_pk_bf16_f32 v17, v17, v17")
    a("v_lshlrev_b32 v201, 16, v17")
    a("ds_write_b128 v206, v[208:211]")
    a("s_waitcnt vmcnt(7)")
    stamp()
    def cmul(d, x, y):
        return [f"v_mul_f32 v{d}, v{x}, v{y}", f"v_mul_f32 v{d+1}, v{x}, v{y+1}",
                f"v_fma_f32 v{d}, -v{x+1}, v{y+1}, v{d}", f"v_fma_f32 v{d+1}, v{x+1}, v{y}, v{d+1}"]
    def build(bt):
        pb = 176 + 8 * bt
        for i in range(6): a(f"v_lshlrev_b32 v{pb+i}, 16, v{pb+i}")
        a(f"v_mul_f32 v8, v201, v{pb}")
        a(f"v_mul_f32 v9, v201, v{pb+1}")
        a("v_mul_f32 v8, s20, v8")
        a("v_mul_f32 v9, s23, v9")
        a(f"v_mul_f32 v10, v201, v{pb+2}")
        a(f"v_mul_f32 v11, v201, v{pb+3}")
        a(f"v_mul_f32 v28, v{pb+4}, v10")
        a(f"v_fma_f32 v28, -v{pb+5}, v11, v28")
        a(f"v_mul_f32 v29, v{pb+4}, v11")
        a(f"v_fma_f32 v29, v{pb+5}, v10, v29")
        for (ex, d, t) in (('v202', 32, 10), ('v203', 30, 12)):
            a(f"v_mul_f32 v{t}, v8, {ex}")
            a(f"v_mul_f32 v{t+1}, v9, {ex}")
        for (ex, d, t) in (('v202', 32, 10), ('v203', 30, 12)):
            a(f"v_exp_f32 v{t}, v{t}")
            a(f"v_fract_f32 v{t+1}, v{t+1}")
        for (ex, d, t) in (('v202', 32, 10), ('v203', 30, 12)):
            a(f"v_cos_f32 v{d}, v{t+1}")
            a(f"v_sin_f32 v{d+1}, v{t+1}")
        for (ex, d, t) in (('v202', 32, 10), ('v203', 30, 12)):
            a(f"v_mul_f32 v{d}, v{t}, v{d}")
            a(f"v_mul_f32 v{d+1}, v{t}, v{d+1}")
        Y = lambda k: 30 + 2 * k
        a("v_mov_b32 v12, 1.0"); a("v_mov_b32 v13, 0")
        for l in cmul(Y(2), Y(1), Y(1)): a(l)
        for l in cmul(46, 30, 30): a(l)
        for l in cmul(Y(3), Y(2), Y(1)): a(l)
        for l in cmul(Y(4), Y(2), Y(2)): a(l)
        for l in cmul(Y(6), Y(3), Y(3)): a(l)
        for l in cmul(Y(5), Y(4), Y(1)): a(l)
        for l in cmul(Y(7), Y(4), Y(3)): a(l)
        a("ds_write_b64 v205, v[12:13]")
        for k in range(1, 8): a(f"ds_write_b64 v205, v[{Y(k)}:{Y(k)+1}] offset:{8*k}")
        a("s_mov_b64 exec, s[26:27]")
        a(f"ds_write_b64 v204, v[30:31] offset:{8*16}")
        a(f"ds_write_b64 v204, v[46:47] offset:{8*24}")
        for k in range(1, 8):
            for l in cmul(48 + 2 * k, 30, Y(k)): a(l)
        for k in range(1, 8): a(f"ds_write_b64 v204, v[{48+2*k}:{49+2*k}] offset:{8*(16+k)}")
        a("s_not_b64 exec, s[26:27]")
        for l in cmul(50, 46, 30): a(l)
        for l in cmul(52, 46, 46): a(l)
        for l in cmul(58, 28, 30): a(l)
        for l in cmul(60, 28, 46): a(l)
        for l in cmul(54, 52, 52): a(l)
        for l in cmul(62, 28, 50): a(l)
        for l in cmul(56, 54, 52): a(l)
        a(f"ds_write_b64 v204, v[12:13] offset:{8*25}")
        for k in range(3): a(f"ds_write_b64 v204, v[{52+2*k}:{53+2*k}] offset:{8*(26+k)}")
        a(f"ds_write_b64 v204, v[28:29] offset:{8*29}")
        for k in range(3): a(f"ds_write_b64 v204, v[{58+2*k}:{59+2*k}] offset:{8*(30+k)}")
        a("s_mov_b64 exec, -1")
    def frag(setid, X, hl): return 80 + 32 * setid + 8 * X + 4 * hl
    def mfmas(setid):
        out = []
        for b in range(3):
            acc = f"v[{160+4*b}:{163+4*b}]"
            Fh = frag(setid, b + 1, 0); Fl = frag(setid, b + 1, 1); Gh = frag(setid, 0, 0); Gl = frag(setid, 0, 1)
            out.append(f"v_mfma_f32_16x16x32_bf16 {acc}, v[{Fh}:{Fh+3}], v[{Gh}:{Gh+3}], {acc}")
            out.append(f"v_mfma_f32_16x16x32_bf16 {acc}, v[{Fh}:{Fh+3}], v[{Gl}:{Gl+3}], {acc}")
            out.append(f"v_mfma_f32_16x16x32_bf16 {acc}, v[{Fl}:{Fl+3}], v[{Gh}:{Gh+3}], {acc}")
        return out
    def treads(idx):
        b = 16 + 14 * (idx % 3)
        off = idx * TS
        return [f"ds_read_b64 v[{b+2*k}:{b+2*k+1}], v{144+k} offset:{off}" for k in range(7)]
    pend = []
    for bt in range(2):
        if bt == 1: a("s_waitcnt vmcnt(0)")
        if bt == 1:
            gettag("K12_T1")
            a("v_mov_b32 v7, 1")
            a(f"v_mov_b32 v15, {CNT}")
            a("s_mov_b64 exec, 1")
            a("ds_add_rtn_u32 v7, v15, v7")
            a("s_waitcnt lgkmcnt(0)")
            a("v_readfirstlane_b32 s7, v7")
            a("s_cmp_lg_u32 s7, 7")
            a("s_cbranch_scc1 K12_NOSIG1")
            a("v_mov_b32 v7, s68")
            a("s_lshl_b32 s7, s3, 7")
            a(f"s_add_u32 s7, s7, {hex(WS_FL)}")
            a("v_mov_b32 v15, s7")
            a("global_store_dword v15, v7, s[64:65] sc1")
            a.label("K12_NOSIG1")
            a("s_mov_b64 exec, -1")
        build(bt)
        for m in pend: a(m)
        pend = []
        a("s_waitcnt lgkmcnt(0)")
        if bt == 0:
            a("s_barrier")
            a("v_bfe_u32 v8, v2, 2, 2")
            a("v_lshl_add_u32 v8, v4, 3, v8")
            a("s_lshr_b32 s7, s6, 2")
            a("s_lshl_b32 s10, s7, 5")
            a("v_add_u32 v8, s10, v8")
            a("s_movk_i32 s10, 144")
            a("v_mul_lo_u32 v8, v8, s10")
            a("v_and_b32 v9, 3, v2")
            a("v_lshl_add_u32 v8, v9, 3, v8")
            a("s_lshl_b32 s10, s9, 5")
            a(f"s_add_u32 s10, s10, {XTL}")
            a("v_add_u32 v8, s10, v8")
            a("ds_read_b64_tr_b16 v[208:209], v8")
            a(f"ds_read_b64_tr_b16 v[210:211], v8 offset:{4*144}")
            a("s_lshl_b32 s10, s67, 6")
            a("s_lshl_b32 s13, s9, 4")
            a("s_add_u32 s10, s10, s13")
            a("v_add_u32 v9, s10, v3")
            a("v_lshlrev_b32 v9, 12, v9")
            a("v_lshl_add_u32 v9, v4, 4, v9")
            a("s_lshl_b32 s10, s66, 7")
            a("s_lshl_b32 s13, s7, 6")
            a("s_add_u32 s10, s10, s13")
            a(f"s_add_u32 s10, s10, {hex(WS_XT)}")
            a("v_add_u32 v9, s10, v9")
            a("s_waitcnt lgkmcnt(0)")
            a("global_store_dwordx4 v9, v[208:211], s[64:65] sc1")
            a("v_mov_b32 v207, 0")
            a("global_load_dword v207, v207, s[62:63] sc1")
        for x in treads(0): a(x)
        for x in treads(1): a(x)
        for ss in range(2):
            body = []
            st = ss
            for e in range(4):
                idx = 4 * ss + e
                if idx < 6:
                    body += treads(idx + 2)
                    body.append("s_waitcnt lgkmcnt(14)")
                elif idx == 6:
                    body.append("s_waitcnt lgkmcnt(7)")
                else:
                    body.append("s_waitcnt lgkmcnt(0)")
                b = 16 + 14 * (idx % 3)
                P, Q, C0, O0, C1, O1, C2 = [b + 2 * k for k in range(7)]
                body += [f"v_mul_f32 v58, v{P}, v{Q}", f"v_mul_f32 v59, v{P}, v{Q+1}",
                         f"v_mul_f32 v60, v{C0}, v{O0}", f"v_mul_f32 v61, v{C0}, v{O0+1}",
                         f"v_mul_f32 v62, v{C1}, v{O1}", f"v_mul_f32 v63, v{C1}, v{O1+1}",
                         f"v_fma_f32 v58, -v{P+1}, v{Q+1}, v58", f"v_fma_f32 v59, -v{P+1}, v{Q}, -v59",
                         f"v_fma_f32 v60, -v{C0+1}, v{O0+1}, v60", f"v_fma_f32 v61, v{C0+1}, v{O0}, v61",
                         f"v_fma_f32 v62, -v{C1+1}, v{O1+1}, v62", f"v_fma_f32 v63, v{C1+1}, v{O1}, v63"]
                vals = [(58, 59), (60, 61), (62, 63), (C2, C2 + 1)]
                order = [3, 0, 1, 2]
                for X in order:
                    r, i = vals[X]
                    body.append(f"v_perm_b32 v{frag(st,X,0)+e}, v{i}, v{r}, s25")
                    body.append(f"v_and_b32 v{66+2*X}, s24, v{r}")
                    body.append(f"v_and_b32 v{67+2*X}, s24, v{i}")
                for X in order:
                    r, i = vals[X]
                    body.append(f"v_sub_f32 v{66+2*X}, v{r}, v{66+2*X}")
                    body.append(f"v_sub_f32 v{67+2*X}, v{i}, v{67+2*X}")
                for X in order:
                    body.append(f"v_perm_b32 v{frag(st,X,1)+e}, v{67+2*X}, v{66+2*X}, s25")
            if pend:
                body = interleave(body, pend, start=8)
            for x in body: a(x)
            pend = mfmas(st)
            if bt == 1 and ss == 0:
                a("s_lshl_b32 s5, s4, 12")
                a(f"s_mul_i32 s10, s8, {CH}")
                a("v_and_b32 v155, 0xff, v0")
                a("v_lshlrev_b32 v156, 4, v155")
                a("v_lshlrev_b32 v157, 2, v156")
                a("s_add_u32 s16, s64, s5")
                a("s_addc_u32 s17, s65, 0")
                add64(a, 30, 16, WS_HT)
                a(f"s_add_u32 s16, s16, {hex(WS_XT)}")
                a("s_addc_u32 s17, s17, 0")
                a(f"v_mov_b32 v158, {CNT+4}")
                a("s_mov_b32 s15, 0")
                a("s_cmp_lg_u32 s6, 0")
                a("s_cbranch_scc1 K12_CHK")
                a("s_lshr_b32 s14, s4, 6")
                a("s_lshl_b32 s14, s14, 5")
                a("v_and_b32 v15, 31, v2")
                a("v_add_u32 v8, s14, v15")
                a("v_add_u32 v15, 224, v15")
                a("v_cmp_gt_u32 vcc, 32, v2")
                a("v_cndmask_b32 v15, v15, v8, vcc")
                a("v_lshlrev_b32 v15, 7, v15")
                a(f"v_add_u32 v15, {hex(WS_FL)}, v15")
                a("s_mov_b32 s14, 0")
                a.label("K12_POLL")
                a("global_load_dword v7, v15, s[64:65] sc1")
                a("s_waitcnt vmcnt(0)")
                a("v_cmp_ne_u32 vcc, s68, v7")
                a("s_add_u32 s14, s14, 1")
                a("s_cbranch_vccz K12_POLLED")
                a("s_sleep 4")
                a("s_cmp_lt_u32 s14, 10000")
                a("s_cbranch_scc1 K12_POLL")
                a.label("K12_POLLED")
                a("v_mov_b32 v7, 1")
                a("ds_write_b32 v158, v7")
                a("s_branch K12_LD1")
                a.label("K12_CHK")
                a("ds_read_b32 v7, v158")
                a("s_waitcnt lgkmcnt(0)")
                a("v_readfirstlane_b32 s14, v7")
                a("s_cmp_eq_u32 s14, 0")
                a("s_cbranch_scc1 K12_NOLD1")
                a.label("K12_LD1")
                a("global_load_dwordx4 v[196:199], v156, s[16:17] sc1")
                for k in range(4):
                    a(f"global_load_dwordx4 v[{208+4*k}:{211+4*k}], v157, s[64:65] offset:{16*k} sc1")
                a("s_mov_b32 s15, 1")
                a.label("K12_NOLD1")
                a("s_waitcnt lgkmcnt(0)")
    for m in pend: a(m)
    a("s_cmp_lg_u32 s15, 0")
    a("s_cbranch_scc1 K12_LDDONE")
    a("s_mov_b32 s14, 0")
    a.label("K12_SPIN")
    a("ds_read_b32 v7, v158")
    a("s_waitcnt lgkmcnt(0)")
    a("v_readfirstlane_b32 s13, v7")
    a("s_add_u32 s14, s14, 1")
    a("s_cmp_lg_u32 s13, 0")
    a("s_cbranch_scc1 K12_SPUN")
    a("s_sleep 2")
    a("s_cmp_lt_u32 s14, 100000")
    a("s_cbranch_scc1 K12_SPIN")
    a.label("K12_SPUN")
    a("global_load_dwordx4 v[196:199], v156, s[16:17] sc1")
    for k in range(4):
        a(f"global_load_dwordx4 v[{208+4*k}:{211+4*k}], v157, s[64:65] offset:{16*k} sc1")
    a.label("K12_LDDONE")
    stamp()
    a("s_mul_i32 s7, s6, 3072")
    a(f"s_add_u32 s7, s7, {PART}")
    a("v_lshlrev_b32 v9, 2, v2")
    a("v_add_u32 v10, s7, v9")
    for r in range(12):
        a(f"ds_write_b32 v10, v{160+r} offset:{r*256}")
    a("v_mov_b32 v3, v155")
    a("v_mov_b32 v4, v156")
    a(f"s_mul_i32 s7, s8, {LS}")
    a(f"s_add_u32 s7, s7, {LIN}")
    a("v_add_u32 v5, s7, v4")
    a("v_mov_b32 v24, 0"); a("v_mov_b32 v25, 0"); a("v_mov_b32 v26, 0"); a("v_mov_b32 v27, 0")
    a("v_cmp_gt_u32 vcc, 2, v3")
    a("s_and_saveexec_b64 s[28:29], vcc")
    a("ds_write_b128 v5, v[24:27]")
    a("ds_write_b128 v5, v[24:27] offset:4128")
    a("s_mov_b64 exec, s[28:29]")
    def ucalc(xr, sr, out, n):
        for k in range(n):
            t = 44 + 3 * (k & 1)
            a(f"v_lshlrev_b32 v{t}, 16, v{xr+k}")
            a(f"v_and_b32 v{t+1}, s24, v{xr+k}")
            a(f"v_sub_f32 v{t}, v{t}, v{sr+4*k}")
            a(f"v_sub_f32 v{t+1}, v{t+1}, v{sr+2+4*k}")
            a(f"v_cvt_pk_bf16_f32 v{t+2}, v{t}, v{t+1}")
            a(f"v_lshlrev_b32 v{t}, 16, v{t+2}")
            a(f"v_and_b32 v{t+1}, s24, v{t+2}")
            a(f"v_mul_f32 v{t}, v{t}, v{sr+1+4*k}")
            a(f"v_mul_f32 v{t+1}, v{t+1}, v{sr+3+4*k}")
            a(f"v_cvt_pk_bf16_f32 v{out+k}, v{t}, v{t+1}")
    a("s_waitcnt vmcnt(0)")
    ucalc(196, 208, 192, 4)
    a("ds_write_b128 v5, v[192:195] offset:32")
    a("v_lshlrev_b32 v10, 3, v3")
    a("v_sub_u32 v10, 0x7ff, v10")
    for e in range(8):
        a(f"v_subrev_u32 v{44+e}, {e}, v10")
        a(f"v_cvt_f32_u32 v{52+e}, v{44+e}")
        a(f"v_cvt_pk_bf16_f32 v{52+e}, v{52+e}, v{52+e}")
        a(f"v_and_b32 v{52+e}, 0xffff, v{52+e}")
        a(f"v_subrev_u32 v{52+e}, 0x4280, v{52+e}")
        a(f"v_med3_i32 v{52+e}, v{52+e}, v{44+e}, s12")
        a(f"v_lshlrev_b32 v{52+e}, 2, v{52+e}")
        a(f"v_add_u32 v{52+e}, s11, v{52+e}")
    a("s_waitcnt lgkmcnt(0)")
    a("s_barrier")
    stamp()
    a("s_mul_i32 s7, s8, 12288")
    a("s_lshl_b32 s13, s9, 8")
    a("s_add_u32 s7, s7, s13")
    a(f"s_add_u32 s7, s7, {PART}")
    a("v_add_u32 v9, s7, v9")
    for b in range(3):
        for w in range(4):
            a(f"ds_read_b32 v{80+4*b+w}, v9 offset:{w*3072 + b*1024}")
    a("v_add_u32 v6, s10, v4")
    a("v_mov_b32 v24, 0"); a("v_mov_b32 v25, 0"); a("v_mov_b32 v26, 0"); a("v_mov_b32 v27, 0")
    a("v_cmp_gt_u32 vcc, 32, v3")
    a("s_and_saveexec_b64 s[28:29], vcc")
    a("ds_write_b128 v6, v[24:27] offset:4096")
    a("ds_write_b128 v6, v[24:27] offset:8704")
    a("s_mov_b64 exec, s[28:29]")
    a("ds_read_b128 v[16:19], v5")
    a("ds_read_b128 v[20:23], v5 offset:16")
    a("ds_read_b128 v[208:211], v5 offset:4096")
    a("ds_read_b128 v[212:215], v5 offset:4112")
    a("s_waitcnt lgkmcnt(0)")
    for b in range(3):
        a(f"v_add_f32 v{80+4*b}, v{80+4*b}, v{81+4*b}")
        a(f"v_add_f32 v{82+4*b}, v{82+4*b}, v{83+4*b}")
        a(f"v_add_f32 v{80+4*b}, v{80+4*b}, v{82+4*b}")
        a(f"ds_write_b32 v{152+b}, v{80+4*b}")
    def copies(c0, off):
        for k in range(4): a(f"v_mov_b32 v{24+k}, v{c0+k+1}")
        for k in range(4): a(f"v_alignbyte_b32 v{30+k}, v{c0+k+1}, v{c0+k}, 2")
        for k in range(4): a(f"v_alignbyte_b32 v{38+k}, v{c0+k+2}, v{c0+k+1}, 2")
        src = {0: c0, 2: 24, 1: 30, 3: 38}
        for s in range(4):
            a(f"ds_write_b128 v6, v[{src[s]}:{src[s]+3}] offset:{UB + s*CS + OS4[s] + off}")
    copies(16, 0)
    a("s_cmp_lg_u32 s9, 0")
    a("s_cbranch_scc1 K12_NOC2")
    a("v_cmp_gt_u32 vcc, 2, v3")
    a("s_and_saveexec_b64 s[28:29], vcc")
    copies(208, 4096)
    a("s_mov_b64 exec, s[28:29]")
    a.label("K12_NOC2")
    a("s_waitcnt lgkmcnt(0)")
    a("s_barrier")
    stamp()
    for e in range(8):
        a(f"ds_read_b32 v{60+e}, v{52+e}")
    a("v_and_b32 v7, 15, v2")
    a("v_lshrrev_b32 v8, 4, v2")
    a("v_lshlrev_b32 v9, 5, v7")
    a("v_lshlrev_b32 v10, 4, v8")
    a("v_sub_u32 v9, v10, v9")
    a("s_lshl_b32 s7, s9, 6")
    a("s_sub_u32 s14, s10, s7")
    a("s_add_u32 s13, s14, 928")
    a("v_add_u32 v9, s13, v9")
    a("v_add_u32 v11, 1, v7")
    a("v_and_b32 v12, 3, v11")
    a("v_lshrrev_b32 v13, 2, v11")
    a("v_lshl_add_u32 v13, v8, 1, v13")
    a("v_lshlrev_b32 v13, 3, v13")
    a("v_lshlrev_b32 v14, 3, v12")
    a("s_mov_b32 s13, 0xa0704000")
    a("v_lshrrev_b32 v14, v14, s13")
    a("v_and_b32 v14, 0xff, v14")
    a("v_add_u32 v13, v13, v14")
    a(f"s_movk_i32 s13, {CS}")
    a("v_mul_lo_u32 v12, v12, s13")
    a("v_add_u32 v13, v13, v12")
    a(f"s_add_u32 s13, s14, {UB + 448}")
    a("v_add_u32 v10, s13, v13")
    a("s_waitcnt lgkmcnt(0)")
    for k in range(4):
        a(f"v_cvt_pk_bf16_f32 v{68+k}, v{60+2*k}, v{61+2*k}")
        a(f"v_lshlrev_b32 v76, 16, v{68+k}")
        a(f"v_and_b32 v77, s24, v{68+k}")
        a(f"v_sub_f32 v76, v{60+2*k}, v76")
        a(f"v_sub_f32 v77, v{61+2*k}, v77")
        a(f"v_cvt_pk_bf16_f32 v{72+k}, v76, v77")
    a("ds_write_b128 v6, v[68:71]")
    a("ds_write_b128 v6, v[72:75] offset:4608")
    for r in range(32): a(f"v_mov_b32 v{160+r}, 0")
    a("s_waitcnt lgkmcnt(0)")
    a("s_barrier")
    stamp()
    for gi in range(2):
        if gi == 1:
            a("v_subrev_u32 v9, 0x100, v9")
            a("v_subrev_u32 v10, 0x100, v10")
        for k in range(8):
            a(f"ds_read_b64 v[{128+4*k}:{129+4*k}], v10 offset:{512*k}")
            a(f"ds_read_b64 v[{130+4*k}:{131+4*k}], v10 offset:{512*k+8}")
            a(f"ds_read_b128 v[{64+8*k}:{67+8*k}], v9 offset:{512*(7-k)}")
            a(f"ds_read_b128 v[{68+8*k}:{71+8*k}], v9 offset:{512*(7-k)+4608}")
        for k in range(8):
            a(f"s_waitcnt lgkmcnt({min(15, 32-4*(k+1))})")
            pairs = [(k, dl) for dl in range(k + 1)] + [(t, k) for t in range(k)]
            for (t, dl) in pairs:
                if t + dl > 7: continue
                seg = t + dl
                acc = f"v[{160+4*seg}:{163+4*seg}]"
                a(f"v_mfma_f32_16x16x32_bf16 {acc}, v[{64+8*t}:{67+8*t}], v[{128+4*dl}:{131+4*dl}], {acc}")
                a(f"v_mfma_f32_16x16x32_bf16 {acc}, v[{68+8*t}:{71+8*t}], v[{128+4*dl}:{131+4*dl}], {acc}")
    a("s_barrier")
    stamp()
    a("s_lshl_b32 s7, s6, 13")
    a("v_lshlrev_b32 v9, 2, v2")
    a("v_add_u32 v9, s7, v9")
    for r in range(32):
        a(f"ds_write_b32 v9, v{160+r} offset:{256*r}")
    a("v_lshrrev_b32 v9, 5, v3")
    a("v_bfe_u32 v10, v3, 1, 4")
    a("v_and_b32 v11, 3, v10")
    a("v_lshl_add_u32 v9, v9, 2, v11")
    a("v_lshlrev_b32 v9, 8, v9")
    a("v_lshrrev_b32 v10, 2, v10")
    a("v_lshl_add_u32 v9, v10, 6, v9")
    a("v_and_b32 v11, 1, v3")
    a("v_lshl_add_u32 v9, v11, 5, v9")
    a("s_lshl_b32 s7, s8, 15")
    a("v_add_u32 v9, s7, v9")
    a("v_lshlrev_b32 v200, 16, v200")
    for k in range(4):
        a(f"v_lshlrev_b32 v25, 16, v{192+k}")
        a(f"v_and_b32 v26, s24, v{192+k}")
        a(f"v_mul_f32 v25, v25, v200")
        a(f"v_mul_f32 v26, v26, v200")
        a(f"v_cvt_pk_bf16_f32 v27, v25, v26")
        a(f"v_lshlrev_b32 v{208+2*k}, 16, v27")
        a(f"v_and_b32 v{209+2*k}, s24, v27")
        a(f"v_lshlrev_b32 v{216+2*k}, 16, v{196+k}")
        a(f"v_and_b32 v{217+2*k}, s24, v{196+k}")
    a("s_waitcnt lgkmcnt(0)")
    a("s_barrier")
    for w in range(4):
        a(f"ds_read_b128 v[{64+8*w}:{67+8*w}], v9 offset:{8192*w}")
        a(f"ds_read_b128 v[{68+8*w}:{71+8*w}], v9 offset:{8192*w+16}")
    a("s_waitcnt lgkmcnt(0)")
    for e in range(8):
        a(f"v_add_f32 v{64+e}, v{64+e}, v{72+e}")
        a(f"v_add_f32 v{80+e}, v{80+e}, v{88+e}")
        a(f"v_add_f32 v{64+e}, v{64+e}, v{80+e}")
    for k in range(4):
        a(f"v_cvt_pk_bf16_f32 v24, v{64+2*k}, v{65+2*k}")
        a(f"v_lshlrev_b32 v25, 16, v24")
        a(f"v_and_b32 v26, s24, v24")
        a(f"v_add_f32 v25, v25, v{208+2*k}")
        a(f"v_add_f32 v26, v26, v{209+2*k}")
        a(f"v_cvt_pk_bf16_f32 v24, v25, v26")
        a(f"v_lshlrev_b32 v25, 16, v24")
        a(f"v_and_b32 v26, s24, v24")
        a(f"v_add_f32 v25, v25, v{216+2*k}")
        a(f"v_add_f32 v26, v26, v{217+2*k}")
        a(f"v_cvt_pk_bf16_f32 v{32+k}, v25, v26")
    a("global_store_dwordx4 v4, v[32:35], s[30:31] sc1")
    a("s_endpgm")
    a.label("K12_TR")
    a.lines.append("; STAMP0")
    ST = 928
    a("v_mov_b32 v7, 0")
    a(f"v_mov_b32 v15, {CNT}")
    a("ds_write_b32 v15, v7")
    a("s_mov_b32 s3, s2")
    a("s_lshl_b32 s3, s3, 6")
    a("v_lshrrev_b32 v3, 3, v0")
    a("v_and_b32 v4, 7, v0")
    a("v_add_u32 v5, s3, v3")
    a("s_movk_i32 s7, 896")
    a("v_mul_lo_u32 v6, v5, s7")
    a("v_lshl_add_u32 v6, v4, 4, v6")
    a("s_waitcnt lgkmcnt(0)")
    a("s_or_b32 s7, s2, s6")
    a("s_cmp_lg_u32 s7, 0")
    a("s_cbranch_scc1 K12_NOTAG")
    a("s_memrealtime s[68:69]")
    a("s_waitcnt lgkmcnt(0)")
    a("s_or_b32 s68, s68, 1")
    a("v_mov_b32 v7, s68")
    a("v_mov_b32 v15, 0")
    a("global_store_dword v15, v7, s[62:63] sc1")
    a("v_mov_b32 v15, 0x20000")
    a("global_store_dword v15, v7, s[64:65]")
    a.label("K12_NOTAG")
    a("v_min_u32 v7, 47, v2")
    a("v_lshlrev_b32 v7, 19, v7")
    a("global_load_dword v220, v7, s[64:65]")
    a("v_min_u32 v7, 3, v2")
    a("v_lshlrev_b32 v7, 19, v7")
    a("global_load_dword v221, v7, s[60:61]")
    a("s_barrier")
    for i in range(7):
        a(f"global_load_dwordx4 v[{16+4*i}:{19+4*i}], v6, s[36:37] offset:{128*i}")
    a("s_waitcnt vmcnt(0)")
    stamp()
    a("v_mov_b32 v207, 0")
    a("global_load_dword v207, v207, s[62:63] sc1")
    a.label("K12_TRX")
    for i in range(7):
        for k in range(4):
            a(f"v_lshlrev_b32 v{48+8*i+2*k}, 16, v{16+4*i+k}")
            a(f"v_and_b32 v{49+8*i+2*k}, s24, v{16+4*i+k}")
    a("v_add_f32 v8, v48, v49")
    a("v_add_f32 v9, v50, v51")
    for k in range(2, 28):
        a(f"v_add_f32 v{8+(k&1)}, v{8+(k&1)}, v{48+2*k}")
        a(f"v_add_f32 v{8+(k&1)}, v{8+(k&1)}, v{49+2*k}")
    a("v_add_f32 v8, v8, v9")
    def red8(r):
        a(f"v_add_f32_dpp {r}, {r}, {r} quad_perm:[1,0,3,2] row_mask:0xf bank_mask:0xf")
        a(f"v_add_f32_dpp {r}, {r}, {r} quad_perm:[2,3,0,1] row_mask:0xf bank_mask:0xf")
        a(f"v_add_f32_dpp {r}, {r}, {r} row_half_mirror row_mask:0xf bank_mask:0xf")
    red8('v8')
    a(f"s_mov_b32 s8, {f32bits(1.0/448)}")
    a("v_mul_f32 v8, s8, v8")
    a("v_mov_b32 v10, 0")
    a("v_mov_b32 v11, 0")
    for k in range(56):
        a(f"v_sub_f32 v{12+(k&1)}, v{48+k}, v8")
        a(f"v_fma_f32 v{10+(k&1)}, v{12+(k&1)}, v{12+(k&1)}, v{10+(k&1)}")
    a("v_add_f32 v10, v10, v11")
    red8('v10')
    a("v_mul_f32 v10, s8, v10")
    a("v_cvt_pk_bf16_f32 v11, v8, v10")
    a("v_lshlrev_b32 v8, 16, v11")
    a("v_and_b32 v10, s24, v11")
    a(f"v_add_f32 v10, {f32bits(1e-5)}, v10")
    a("v_cvt_pk_bf16_f32 v10, v10, v10")
    a("v_lshlrev_b32 v10, 16, v10")
    a("v_sqrt_f32 v10, v10")
    a("v_cvt_pk_bf16_f32 v10, v10, v10")
    a("v_lshlrev_b32 v10, 16, v10")
    a("v_rcp_f32 v9, v10")
    a("v_lshlrev_b32 v5, 3, v5")
    a("v_cmp_eq_u32 vcc, 0, v4")
    a("s_and_saveexec_b64 s[28:29], vcc")
    a("global_store_dwordx2 v5, v[8:9], s[64:65] sc1")
    a("s_mov_b64 exec, s[28:29]")
    a("s_waitcnt vmcnt(0)")
    stamp()
    gettag("K12_T2")
    a("v_mov_b32 v7, 1")
    a(f"v_mov_b32 v15, {CNT}")
    a("s_mov_b64 exec, 1")
    a("ds_add_rtn_u32 v7, v15, v7")
    a("s_waitcnt lgkmcnt(0)")
    a("v_readfirstlane_b32 s7, v7")
    a("s_cmp_lg_u32 s7, 7")
    a("s_cbranch_scc1 K12_NOSIG")
    a("v_mov_b32 v7, s68")
    a("s_add_u32 s7, s2, 224")
    a("s_lshl_b32 s7, s7, 7")
    a(f"s_add_u32 s7, s7, {hex(WS_FL)}")
    a("v_mov_b32 v15, s7")
    a("global_store_dword v15, v7, s[64:65] sc1")
    a.label("K12_NOSIG")
    a("s_mov_b64 exec, -1")
    a("s_barrier")
    a("s_mov_b32 s3, s2")
    a("s_lshl_b32 s3, s3, 3")
    a("s_add_u32 s3, s3, s6")
    a("s_mul_i32 s7, s6, 5120")
    a("v_lshrrev_b32 v3, 3, v2")
    a("v_and_b32 v4, 7, v2")
    a("s_movk_i32 s8, 3584")
    a("v_mul_lo_u32 v5, v3, s8")
    a("v_lshl_add_u32 v5, v4, 4, v5")
    a("s_movk_i32 s8, 160")
    a("v_mul_lo_u32 v6, v3, s8")
    a("v_lshl_add_u32 v6, v4, 4, v6")
    a("v_add_u32 v6, s7, v6")
    a("v_lshrrev_b32 v7, 4, v2")
    a("v_bfe_u32 v8, v2, 2, 2")
    a("v_lshl_add_u32 v7, v7, 2, v8")
    a("v_mul_lo_u32 v7, v7, s8")
    a("v_and_b32 v8, 3, v2")
    a("v_lshl_add_u32 v7, v8, 4, v7")
    a("v_add_u32 v7, s7, v7")
    a("v_lshlrev_b32 v8, 4, v2")
    add64(a, 34, 64, WS_W1F)
    a.label("K12_TRL")
    a("s_cmp_ge_u32 s3, 392")
    a("s_cbranch_scc1 K12_TR2")
    a("s_mul_i32 s9, s3, 9363")
    a("s_lshr_b32 s9, s9, 18")
    a("s_mul_i32 s10, s9, 28")
    a("s_sub_u32 s10, s3, s10")
    a("s_mul_i32 s11, s9, 114688")
    a("s_lshl_b32 s12, s10, 7")
    a("s_add_u32 s11, s11, s12")
    a("v_add_u32 v9, s11, v5")
    for i in range(4):
        if i: a(f"v_add_u32 v9, {8*3584}, v9")
        a(f"global_load_dwordx4 v[{16+4*i}:{19+4*i}], v9, s[56:57]")
    for i in range(4):
        a(f"s_waitcnt vmcnt({3-i})")
        a(f"ds_write_b128 v6, v[{16+4*i}:{19+4*i}] offset:{8*160*i}")
    a("s_waitcnt lgkmcnt(0)")
    for fgl in range(2):
        for T in range(2):
            b = 32 + 8 * fgl + 4 * T
            a(f"ds_read_b64_tr_b16 v[{b}:{b+1}], v7 offset:{64*fgl+8*T}")
            a(f"ds_read_b64_tr_b16 v[{b+2}:{b+3}], v7 offset:{64*fgl+8*T+16*160}")
    a("s_mul_i32 s11, s10, 57344")
    a("s_lshl_b32 s12, s9, 11")
    a("s_add_u32 s11, s11, s12")
    a("v_add_u32 v9, s11, v8")
    a("v_add_u32 v10, 28672, v9")
    a("s_waitcnt lgkmcnt(0)")
    a("global_store_dwordx4 v9, v[32:35], s[34:35] sc1")
    a("global_store_dwordx4 v9, v[36:39], s[34:35] offset:1024 sc1")
    a("global_store_dwordx4 v10, v[40:43], s[34:35] sc1")
    a("global_store_dwordx4 v10, v[44:47], s[34:35] offset:1024 sc1")
    a("s_add_u32 s3, s3, 256")
    a("s_branch K12_TRL")
    a.label("K12_TR2")
    a("s_lshl_b32 s3, s2, 3")
    a("s_add_u32 s3, s3, s6")
    a("s_movk_i32 s8, 896")
    a("v_mul_lo_u32 v5, v3, s8")
    a("v_lshl_add_u32 v5, v4, 4, v5")
    a("s_movk_i32 s8, 160")
    a("v_lshrrev_b32 v7, 4, v2")
    a("v_bfe_u32 v9, v2, 2, 2")
    a("v_lshl_add_u32 v7, v7, 3, v9")
    a("v_mul_lo_u32 v7, v7, s8")
    a("v_and_b32 v9, 3, v2")
    a("v_lshl_add_u32 v7, v9, 3, v7")
    a("v_add_u32 v7, s7, v7")
    add64(a, 34, 64, WS_W2F)
    a.label("K12_TRL2")
    a("s_cmp_ge_u32 s3, 392")
    a("s_cbranch_scc1 K12_END")
    a("s_mul_i32 s9, s3, 9363")
    a("s_lshr_b32 s9, s9, 16")
    a("s_mul_i32 s10, s9, 7")
    a("s_sub_u32 s10, s3, s10")
    a("s_mul_i32 s11, s9, 28672")
    a("s_lshl_b32 s12, s10, 7")
    a("s_add_u32 s11, s11, s12")
    a("v_add_u32 v9, s11, v5")
    for i in range(4):
        if i: a(f"v_add_u32 v9, {8*896}, v9")
        a(f"global_load_dwordx4 v[{16+4*i}:{19+4*i}], v9, s[58:59]")
    for i in range(4):
        a(f"s_waitcnt vmcnt({3-i})")
        a(f"ds_write_b128 v6, v[{16+4*i}:{19+4*i}] offset:{8*160*i}")
    a("s_waitcnt lgkmcnt(0)")
    for T in range(4):
        b = 32 + 4 * T
        a(f"ds_read_b64_tr_b16 v[{b}:{b+1}], v7 offset:{32*T}")
        a(f"ds_read_b64_tr_b16 v[{b+2}:{b+3}], v7 offset:{32*T+4*160}")
    a("s_mul_i32 s11, s10, 229376")
    a("s_lshl_b32 s12, s9, 12")
    a("s_add_u32 s11, s11, s12")
    a("v_add_u32 v9, s11, v8")
    a("s_waitcnt lgkmcnt(0)")
    for T in range(4):
        a(f"global_store_dwordx4 v9, v[{32+4*T}:{35+4*T}], s[34:35] offset:{1024*T} sc1")
    a("s_add_u32 s3, s3, 256")
    a("s_branch K12_TRL2")
    a.label("K12_END")
    a("s_endpgm")
    return a.finalize(), 232, XTL + 9216

if __name__ == '__main__':
    ks = [('k12_kernel', gen_k12, 256, 512), ('k3_kernel', gen_k3, 256, 512), ('k4_kernel', gen_k4, 224, 512)]
    open('cdna_kernels/' + NAME + '.s', 'w').write(build(ks))
```

```python
from gen12 import *

WS_TAG = 0x20000
WS_FL2 = 0x30000
def gen_k34():
    a = Asm()
    PART = 0; FIN = 4096; AT = 4608
    RS = 272; WSZ = 64 * RS
    CNT2 = 8 * WSZ
    stamp = lambda: a.lines.append("; STAMP")
    a("s_cmp_ge_u32 s2, 256")
    a("s_cbranch_scc1 K34_END")
    a("s_load_dwordx2 s[32:33], s[0:1], 112")
    a("s_cmp_ge_u32 s2, 224")
    a("s_cbranch_scc1 K34_PF")
    a("s_load_dwordx2 s[30:31], s[0:1], 96")
    a("v_lshrrev_b32 v1, 6, v0")
    a("v_readfirstlane_b32 s6, v1")
    a("v_and_b32 v2, 63, v0")
    tile_ids(a)
    a("s_lshl_b32 s5, s3, 7")
    a("v_and_b32 v3, 7, v0")
    a("v_lshrrev_b32 v4, 3, v0")
    a("v_lshlrev_b32 v5, 4, v3")
    a("v_add_u32 v5, s5, v5")
    a("v_lshl_add_u32 v6, v4, 12, v5")
    a("v_lshlrev_b32 v7, 1, v0")
    a("v_add_u32 v7, s5, v7")
    a("v_mov_b32 v8, 0")
    a(f"v_mov_b32 v9, {CNT2}")
    a("ds_write_b32 v9, v8")
    a("ds_write_b32 v9, v8 offset:4")
    a("s_waitcnt lgkmcnt(0)")
    a(f"s_add_u32 s12, s32, {hex(WS_HT)}")
    a("s_addc_u32 s13, s33, 0")
    a("s_mov_b32 s14, 0x1c0000")
    a("s_mov_b32 s15, 0x00020000")
    a(f"s_add_u32 s16, s32, {hex(WS_W1F)}")
    a("s_addc_u32 s17, s33, 0")
    a("s_mov_b32 s18, 0x188000")
    a("s_mov_b32 s19, 0x00020000")
    a(f"s_load_dword s60, s[32:33], {hex(WS_TAG)}")
    for i in range(7):
        a(f"s_mov_b32 s{20+i}, {hex(i*262144)}")
    for i in range(7):
        a(f"buffer_load_dwordx4 v[{16+4*i}:{19+4*i}], v6, s[12:15], s{20+i} offen")
    a("buffer_load_dwordx4 v[44:47], v5, s[12:15], 0 offen")
    a("buffer_load_ushort v8, v7, s[12:15], 0 offen")
    a("s_lshl_b32 s7, s4, 3")
    a("s_add_u32 s7, s7, s6")
    a("s_mul_i32 s8, s7, 28672")
    a("v_lshlrev_b32 v9, 4, v2")
    a("v_add_u32 v10, s8, v9")
    for i in range(8):
        a(f"s_mov_b32 s{34+i}, {i*4096}")
    wl = [f"buffer_load_dwordx4 v[{128+4*k}:{131+4*k}], v10, s[16:19], s{34+k//4} offen offset:{(k%4)*1024}" for k in range(28)]
    a("s_mov_b32 s44, 0xffff0000")
    a("s_waitcnt vmcnt(1)")
    stamp()
    for k in range(4):
        a(f"v_lshlrev_b32 v{104+2*k}, 16, v{44+k}")
        a(f"v_and_b32 v{105+2*k}, s44, v{44+k}")
    for r in range(16): a(f"v_mov_b32 v{112+r}, 0")
    for i in range(7):
        for k in range(4):
            a(f"v_lshlrev_b32 v{48+8*i+2*k}, 16, v{16+4*i+k}")
            a(f"v_and_b32 v{49+8*i+2*k}, s44, v{16+4*i+k}")
        for r in range(8):
            a(f"v_sub_f32 v{12+(r&3)}, v{48+8*i+r}, v{104+r}")
            a(f"v_add_f32 v{112+r}, v{112+r}, v{12+(r&3)}")
            a(f"v_fma_f32 v{120+r}, v{12+(r&3)}, v{12+(r&3)}, v{120+r}")
        a(wl[2*i]); a(wl[2*i+1])
    for k in range(8): a(f"v_permlane32_swap_b32 v{112+k}, v{120+k}")
    for k in range(8): a(f"v_add_f32 v{112+k}, v{112+k}, v{120+k}")
    for k in range(4): a(f"v_permlane16_swap_b32 v{112+k}, v{116+k}")
    for k in range(4): a(f"v_add_f32 v{112+k}, v{112+k}, v{116+k}")
    for k in range(4): a(f"v_add_f32_dpp v{112+k}, v{112+k}, v{112+k} row_ror:8 row_mask:0xf bank_mask:0xf")
    a("v_lshrrev_b32 v12, 5, v2")
    a("v_bfe_u32 v13, v2, 4, 1")
    a("v_lshlrev_b32 v14, 5, v3")
    a("v_lshl_add_u32 v14, v13, 4, v14")
    a("v_lshl_add_u32 v14, v12, 8, v14")
    a("s_lshl_b32 s9, s6, 9")
    a("v_add_u32 v14, s9, v14")
    a(f"ds_write_b128 v14, v[112:115] offset:{PART}")
    a("s_waitcnt lgkmcnt(0)")
    a("s_barrier")
    stamp()
    a("s_cmp_lg_u32 s6, 0")
    a("s_cbranch_scc1 K34_SKIP")
    a("v_lshlrev_b32 v12, 2, v2")
    for w in range(8):
        a(f"ds_read_b32 v{112+w}, v12 offset:{PART + 512*w}")
        a(f"ds_read_b32 v{120+w}, v12 offset:{PART + 512*w + 256}")
    a("s_waitcnt lgkmcnt(0)")
    for st in (112, 120):
        a(f"v_add_f32 v{st}, v{st}, v{st+1}")
        a(f"v_add_f32 v{st+2}, v{st+2}, v{st+3}")
        a(f"v_add_f32 v{st+4}, v{st+4}, v{st+5}")
        a(f"v_add_f32 v{st+6}, v{st+6}, v{st+7}")
        a(f"v_add_f32 v{st}, v{st}, v{st+2}")
        a(f"v_add_f32 v{st+4}, v{st+4}, v{st+6}")
        a(f"v_add_f32 v{st}, v{st}, v{st+4}")
    a(f"s_mov_b32 s9, {f32bits(1.0/448)}")
    a("v_mul_f32 v112, s9, v112")
    a("v_mul_f32 v120, s9, v120")
    a("v_fma_f32 v120, -v112, v112, v120")
    a("v_max_f32 v120, 0, v120")
    a("s_waitcnt vmcnt(14)")
    a("v_lshlrev_b32 v8, 16, v8")
    a("v_add_f32 v112, v8, v112")
    a("v_cvt_pk_bf16_f32 v13, v112, v120")
    a("v_lshlrev_b32 v112, 16, v13")
    a("v_and_b32 v120, s44, v13")
    a(f"v_add_f32 v120, {f32bits(1e-5)}, v120")
    a("v_cvt_pk_bf16_f32 v120, v120, v120")
    a("v_lshlrev_b32 v120, 16, v120")
    a("v_sqrt_f32 v120, v120")
    a("v_cvt_pk_bf16_f32 v120, v120, v120")
    a("v_lshlrev_b32 v120, 16, v120")
    a("v_rcp_f32 v120, v120")
    a(f"ds_write_b32 v12, v112 offset:{FIN}")
    a(f"ds_write_b32 v12, v120 offset:{FIN+256}")
    a("s_waitcnt lgkmcnt(0)")
    a.label("K34_SKIP")
    a("s_barrier")
    a("v_lshlrev_b32 v12, 5, v3")
    a(f"ds_read_b128 v[104:107], v12 offset:{FIN}")
    a(f"ds_read_b128 v[108:111], v12 offset:{FIN+16}")
    a(f"ds_read_b128 v[112:115], v12 offset:{FIN+256}")
    a(f"ds_read_b128 v[116:119], v12 offset:{FIN+272}")
    a("s_movk_i32 s9, 160")
    a("v_mul_lo_u32 v13, v4, s9")
    a("v_lshl_add_u32 v13, v3, 4, v13")
    a(f"v_add_u32 v13, {AT}, v13")
    a("s_waitcnt lgkmcnt(0)")
    for i in range(7):
        for k in range(4):
            x0 = 48 + 8 * i + 2 * k; x1 = x0 + 1
            a(f"v_sub_f32 v{x0}, v{x0}, v{104+2*k}")
            a(f"v_sub_f32 v{x1}, v{x1}, v{105+2*k}")
            a(f"v_cvt_pk_bf16_f32 v{12+2*(k&1)}, v{x0}, v{x1}")
            a(f"v_lshlrev_b32 v{x0}, 16, v{12+2*(k&1)}")
            a(f"v_and_b32 v{x1}, s44, v{12+2*(k&1)}")
            a(f"v_mul_f32 v{x0}, v{x0}, v{112+2*k}")
            a(f"v_mul_f32 v{x1}, v{x1}, v{113+2*k}")
            a(f"v_cvt_pk_bf16_f32 v{16+4*i+k}, v{x0}, v{x1}")
        a(f"ds_write_b128 v13, v[{16+4*i}:{19+4*i}] offset:{64*160*i}")
        a(wl[14+2*i]); a(wl[15+2*i])
    a("v_lshrrev_b32 v4, 4, v2")
    a("v_bfe_u32 v5, v2, 2, 2")
    a("v_lshl_add_u32 v4, v4, 2, v5")
    a("v_mul_lo_u32 v4, v4, s9")
    a("v_and_b32 v5, 3, v2")
    a("v_lshl_add_u32 v4, v5, 3, v4")
    a(f"v_add_u32 v4, {AT}, v4")
    a("v_add_u32 v5, 35840, v4")
    for r in range(32): a(f"v_mov_b32 v{96+r}, 0")
    a(f"s_add_u32 s48, s32, {hex(WS_W2F)}")
    a("s_addc_u32 s49, s33, 0")
    a("s_mov_b32 s50, 0x188000")
    a("s_mov_b32 s51, 0x00020000")
    a("s_mul_i32 s8, s4, 229376")
    a("s_lshl_b32 s10, s6, 12")
    a("s_add_u32 s8, s8, s10")
    a("v_add_u32 v11, s8, v9")
    for i in range(7):
        a(f"s_add_u32 s8, s4, {i}")
        a("s_cmp_ge_u32 s8, 7")
        a("s_cselect_b32 s10, 7, 0")
        a("s_sub_u32 s8, s8, s10")
        a(f"s_lshl_b32 s{61+i}, s8, 15")
    a("s_waitcnt lgkmcnt(0)")
    a("s_barrier")
    stamp()
    def trreads(s):
        b = 16 + 16 * (s & 1)
        base = 'v4' if s < 7 else 'v5'; so = (s % 7) * 5120
        out = []
        for mt in range(4):
            out.append(f"ds_read_b64_tr_b16 v[{b+4*mt}:{b+4*mt+1}], {base} offset:{so+32*mt}")
            out.append(f"ds_read_b64_tr_b16 v[{b+4*mt+2}:{b+4*mt+3}], {base} offset:{so+32*mt+2560}")
        return out
    w2l = [f"buffer_load_dwordx4 v[{128+4*k}:{131+4*k}], v11, s[48:51], s{61+k//4} offen offset:{(k%4)*1024}" for k in range(28)]
    NI = 10
    for x in trreads(0): a(x)
    for s in range(14):
        if s < 13:
            for x in trreads(s + 1): a(x)
        nW2 = 2 * min(max(0, s - 1), NI)
        a(f"s_waitcnt vmcnt({26-2*s + nW2}) lgkmcnt({8 if s < 13 else 0})")
        b = 16 + 16 * (s & 1)
        for mt in range(4):
            for T in range(2):
                acc = f"v[{96+16*T+4*mt}:{99+16*T+4*mt}]"
                w = 128 + 8 * s + 4 * T
                a(f"v_mfma_f32_16x16x32_bf16 {acc}, v[{w}:{w+3}], v[{b+4*mt}:{b+4*mt+3}], {acc}")
        if 1 <= s <= NI:
            a(w2l[2*(s-1)]); a(w2l[2*(s-1)+1])
    stamp()
    a("s_mul_i32 s8, s3, 229376")
    a("s_lshl_b32 s9, s7, 10")
    a("s_add_u32 s8, s8, s9")
    a("v_add_u32 v10, s8, v9")
    add64(a, 46, 32, WS_H1F)
    for mt in range(4):
        for T in range(2):
            for r in range(4):
                a(f"v_max_f32 v{96+16*T+4*mt+r}, 0, v{96+16*T+4*mt+r}")
        o = 80 + 4 * mt
        a(f"v_cvt_pk_bf16_f32 v{o}, v{96+4*mt}, v{97+4*mt}")
        a(f"v_cvt_pk_bf16_f32 v{o+1}, v{98+4*mt}, v{99+4*mt}")
        a(f"v_cvt_pk_bf16_f32 v{o+2}, v{112+4*mt}, v{113+4*mt}")
        a(f"v_cvt_pk_bf16_f32 v{o+3}, v{114+4*mt}, v{115+4*mt}")
        if mt: a(f"v_add_u32 v10, 57344, v10")
        a(f"global_store_dwordx4 v10, v[{o}:{o+3}], s[46:47] sc1")
    a("v_lshrrev_b32 v3, 3, v0")
    a("v_and_b32 v4, 7, v0")
    a("s_lshl_b32 s8, s4, 18")
    a("s_lshl_b32 s9, s3, 7")
    a("s_add_u32 s8, s8, s9")
    a("v_lshlrev_b32 v5, 15, v4")
    a("v_lshl_add_u32 v5, v3, 1, v5")
    a("v_add_u32 v5, s8, v5")
    for r in range(64): a(f"v_mov_b32 v{16+r}, 0")
    a(f"s_add_u32 s52, s32, {hex(WS_H1F)}")
    a("s_addc_u32 s53, s33, 0")
    a("s_mov_b32 s54, 0x700000")
    a("s_mov_b32 s55, 0x00020000")
    a("s_mul_i32 s8, s3, 229376")
    a("s_lshl_b32 s9, s6, 10")
    a("s_add_u32 s8, s8, s9")
    a("v_add_u32 v10, s8, v9")
    a("v_add_u32 v12, 57344, v10")
    a("v_add_u32 v13, 57344, v12")
    a("v_add_u32 v14, 57344, v13")
    for i in range(1, 7):
        a(f"s_lshr_b32 s{20+i}, s{61+i}, 2")
    a("s_waitcnt vmcnt(0) lgkmcnt(0)")
    a("v_mov_b32 v7, 1")
    a(f"v_mov_b32 v15, {CNT2}")
    a("s_mov_b64 exec, 1")
    a("ds_add_rtn_u32 v7, v15, v7")
    a("s_waitcnt lgkmcnt(0)")
    a("v_readfirstlane_b32 s8, v7")
    a("s_cmp_lg_u32 s8, 7")
    a("s_cbranch_scc1 K34_NOSIG")
    a("v_mov_b32 v7, s60")
    a("s_lshl_b32 s8, s2, 7")
    a(f"s_add_u32 s8, s8, {hex(WS_FL2)}")
    a("v_mov_b32 v15, s8")
    a("global_store_dword v15, v7, s[32:33] sc1")
    a.label("K34_NOSIG")
    a("s_mov_b64 exec, -1")
    for T in range(4):
        for mt in range(4):
            acc = f"v[{16+16*T+4*mt}:{19+16*T+4*mt}]"
            a(f"v_mfma_f32_16x16x32_bf16 {acc}, v[{128+4*T}:{131+4*T}], v[{80+4*mt}:{83+4*mt}], {acc}")
    a("s_cmp_eq_u32 s6, 0")
    a("s_cbranch_scc1 K34_DOPOLL")
    for x in w2l[2*NI:]: a(x)
    for e in range(8):
        a(f"buffer_load_ushort v{240+e}, v5, s[12:15], s{34+e} offen")
    a("s_branch K34_NOPOLL")
    a.label("K34_DOPOLL")
    a("s_and_b32 s8, s2, 31")
    a("v_min_u32 v15, 6, v2")
    a("v_lshlrev_b32 v15, 5, v15")
    a("v_add_u32 v15, s8, v15")
    a("v_lshlrev_b32 v15, 7, v15")
    a(f"v_add_u32 v15, {hex(WS_FL2)}, v15")
    a("s_mov_b32 s8, 0")
    a.label("K34_POLL")
    a("global_load_dword v7, v15, s[32:33] sc1")
    a("s_waitcnt vmcnt(0)")
    a("v_cmp_ne_u32 vcc, s60, v7")
    a("s_add_u32 s8, s8, 1")
    a("s_cbranch_vccz K34_POLLED")
    a("s_sleep 2")
    a("s_cmp_lt_u32 s8, 20000")
    a("s_cbranch_scc1 K34_POLL")
    a.label("K34_POLLED")
    for x in w2l[2*NI:]: a(x)
    for e in range(8):
        a(f"buffer_load_ushort v{240+e}, v5, s[12:15], s{34+e} offen")
    a.label("K34_NOPOLL")
    a("s_barrier")
    stamp()
    NB = 3
    AV = ['v10', 'v12', 'v13', 'v14']
    def loads(i):
        b = 80 + 16 * (i % NB)
        return [f"buffer_load_dwordx4 v[{b+4*mt}:{b+4*mt+3}], {AV[mt]}, s[52:55], s{20+i} offen sc1" for mt in range(4)]
    for i in range(1, 1 + NB):
        for x in loads(i): a(x)
    for i in range(1, 7):
        rem = min(7, i + NB) - (i + 1)
        a(f"s_waitcnt vmcnt({4*rem})")
        if i == 1: stamp()
        b = 80 + 16 * (i % NB)
        for T in range(4):
            for mt in range(4):
                acc = f"v[{16+16*T+4*mt}:{19+16*T+4*mt}]"
                w = 128 + 16 * i + 4 * T
                a(f"v_mfma_f32_16x16x32_bf16 {acc}, v[{w}:{w+3}], v[{b+4*mt}:{b+4*mt+3}], {acc}")
        if i + NB < 7:
            for x in loads(i + NB): a(x)
    stamp()
    a("v_and_b32 v6, 15, v2")
    a("v_lshrrev_b32 v7, 4, v2")
    a(f"s_movk_i32 s8, {RS}")
    a("v_mul_lo_u32 v6, v6, s8")
    a("v_lshl_add_u32 v6, v7, 4, v6")
    a(f"s_mul_i32 s9, s6, {WSZ}")
    a("v_add_u32 v6, s9, v6")
    for T in range(4):
        for mt in range(4):
            a(f"ds_write_b128 v6, v[{16+16*T+4*mt}:{19+16*T+4*mt}] offset:{mt*16*RS + 64*T}")
    a("s_waitcnt lgkmcnt(0)")
    a("s_barrier")
    stamp()
    a("v_mul_lo_u32 v6, v3, s8")
    a("v_lshl_add_u32 v6, v4, 5, v6")
    a(f"v_add_u32 v7, {4*WSZ}, v6")
    for w in range(8):
        base = 'v6' if w < 4 else 'v7'
        a(f"ds_read_b128 v[{80+8*w}:{83+8*w}], {base} offset:{(w%4)*WSZ}")
        a(f"ds_read_b128 v[{84+8*w}:{87+8*w}], {base} offset:{(w%4)*WSZ+16}")
    a("s_waitcnt lgkmcnt(0)")
    for e in range(8):
        a(f"v_add_f32 v{80+e}, v{80+e}, v{88+e}")
        a(f"v_add_f32 v{96+e}, v{96+e}, v{104+e}")
        a(f"v_add_f32 v{112+e}, v{112+e}, v{120+e}")
        a(f"v_add_f32 v{128+e}, v{128+e}, v{136+e}")
        a(f"v_add_f32 v{80+e}, v{80+e}, v{96+e}")
        a(f"v_add_f32 v{112+e}, v{112+e}, v{128+e}")
        a(f"v_add_f32 v{80+e}, v{80+e}, v{112+e}")
    for k in range(4):
        a(f"v_cvt_pk_bf16_f32 v12, v{80+2*k}, v{81+2*k}")
        a(f"v_lshlrev_b32 v13, 16, v12")
        a(f"v_and_b32 v14, s44, v12")
        a(f"v_lshlrev_b32 v{240+2*k}, 16, v{240+2*k}")
        a(f"v_lshlrev_b32 v{241+2*k}, 16, v{241+2*k}")
        a(f"v_add_f32 v13, v13, v{240+2*k}")
        a(f"v_add_f32 v14, v14, v{241+2*k}")
        a(f"v_cvt_pk_bf16_f32 v{16+k}, v13, v14")
    a("s_lshl_b32 s8, s3, 6")
    a("v_add_u32 v5, s8, v3")
    a("s_movk_i32 s9, 896")
    a("v_mul_lo_u32 v5, v5, s9")
    a("v_lshl_add_u32 v5, v4, 4, v5")
    a("s_lshl_b32 s8, s4, 7")
    a("v_add_u32 v5, s8, v5")
    a("global_store_dwordx4 v5, v[16:19], s[30:31]")
    a("s_endpgm")
    a.label("K34_PF")
    a("s_sub_u32 s3, s2, 224")
    a("s_lshr_b32 s3, s3, 3")
    a("s_mul_i32 s3, s3, 401408")
    a("v_lshlrev_b32 v1, 4, v0")
    a("v_add_u32 v1, s3, v1")
    a("s_waitcnt lgkmcnt(0)")
    a(f"s_add_u32 s12, s32, {hex(WS_W2F)}")
    a("s_addc_u32 s13, s33, 0")
    a("s_mov_b32 s14, 0x188000")
    a("s_mov_b32 s15, 0x00020000")
    a("s_mov_b32 s4, 0")
    a.label("K34_PFL")
    for k in range(7):
        a(f"buffer_load_dwordx4 v[{8+4*k}:{11+4*k}], v1, s[12:15], s4 offen")
        a("s_add_u32 s4, s4, 8192")
    a("s_waitcnt vmcnt(0)")
    a("s_cmp_lt_u32 s4, 401408")
    a("s_cbranch_scc1 K34_PFL")
    a.label("K34_END")
    a("s_endpgm")
    return a.finalize(), 248, CNT2 + 64

if __name__ == '__main__':
    ks = [('k12_kernel', gen_k12, 256, 512), ('k34_kernel', gen_k34, 256, 512)]
    open('cdna_kernels/' + NAME + '.s', 'w').write(build(ks))
```

```python
from gen3 import *

PFN = 2
WS_ST = 0x0
WS_FL = 0x10000
def gen_k12():
    a = Asm()
    CH = 26624; UB = 9216; CS = 4352
    OS4 = [0, 64, 112, 160]
    TS = 264
    LIN = 92160; LS = 4224
    PART = 115200; TT = 139776; CNT = 147968; XTL = 148096
    stamp = lambda: a.lines.append("; STAMP")
    def gettag(lbl):
        a("v_readfirstlane_b32 s68, v207")
        a("s_cmp_lg_u32 s68, 0")
        a(f"s_cbranch_scc1 {lbl}_OK")
        a("s_mov_b32 s69, 0")
        a.label(f"{lbl}_L")
        a("s_sleep 4")
        a("v_mov_b32 v207, 0")
        a("global_load_dword v207, v207, s[62:63] sc1")
        a("s_waitcnt vmcnt(0)")
        a("v_readfirstlane_b32 s68, v207")
        a("s_add_u32 s69, s69, 1")
        a("s_cmp_lg_u32 s68, 0")
        a(f"s_cbranch_scc1 {lbl}_OK")
        a("s_cmp_lt_u32 s69, 20000")
        a(f"s_cbranch_scc1 {lbl}_L")
        a.label(f"{lbl}_OK")
    a("s_cmp_ge_u32 s2, 256")
    a("s_cbranch_scc1 K12_END")
    a("s_load_dwordx16 s[36:51], s[0:1], 0")
    a("s_load_dwordx8 s[52:59], s[0:1], 64")
    a("s_load_dwordx4 s[60:63], s[0:1], 96")
    a("s_load_dwordx2 s[64:65], s[0:1], 112")
    a("v_lshrrev_b32 v1, 6, v0")
    a("v_readfirstlane_b32 s6, v1")
    a("v_and_b32 v2, 63, v0")
    a("s_lshr_b32 s8, s6, 2")
    a("s_and_b32 s9, s6, 3")
    a("s_sub_u32 s4, s2, 32")
    a("s_lshl_b32 s4, s4, 1")
    a(f"s_mov_b32 s20, {L2E}")
    a(f"s_mov_b32 s21, {L2E_LO}")
    a(f"s_mov_b32 s22, {LN2}")
    a(f"s_mov_b32 s23, {INV2PI}")
    a("s_mov_b32 s24, 0xffff0000")
    a("s_mov_b32 s25, 0x07060302")
    a("s_cmp_lt_u32 s2, 32")
    a("s_cbranch_scc1 K12_TR")
    a("s_add_u32 s4, s4, s8")
    a("v_and_b32 v5, 31, v2")
    a("v_lshlrev_b32 v5, 1, v5")
    a("s_lshl_b32 s7, s4, 9")
    a("s_lshl_b32 s10, s9, 7")
    a("s_add_u32 s7, s7, s10")
    a("v_add_u32 v5, s7, v5")
    a("s_lshl_b32 s7, s4, 1")
    a("v_mov_b32 v6, s7")
    a("s_sub_u32 s3, s2, 32")
    a("s_and_b32 s66, s3, 31")
    a("s_lshr_b32 s67, s3, 5")
    a("v_lshrrev_b32 v7, 3, v0")
    a("v_and_b32 v8, 7, v0")
    a("s_lshl_b32 s7, s66, 6")
    a("v_add_u32 v9, s7, v7")
    a("s_movk_i32 s7, 896")
    a("v_mul_lo_u32 v9, v9, s7")
    a("v_lshl_add_u32 v9, v8, 4, v9")
    a("s_lshl_b32 s7, s67, 7")
    a("v_add_u32 v9, s7, v9")
    a("s_movk_i32 s7, 144")
    a("v_mul_lo_u32 v206, v7, s7")
    a("v_lshl_add_u32 v206, v8, 4, v206")
    a(f"v_add_u32 v206, {XTL}, v206")
    a("v_mov_b32 v7, 0")
    a(f"v_mov_b32 v15, {CNT}")
    a("ds_write_b32 v15, v7")
    a("ds_write_b32 v15, v7 offset:4")
    a("s_waitcnt lgkmcnt(0)")
    a("global_load_dwordx4 v[208:211], v9, s[36:37]")
    a("global_load_ushort v14, v6, s[50:51]")
    for bt in range(2):
        for i, sp in enumerate((38, 40, 42, 44, 46, 48)):
            a(f"global_load_ushort v{176+8*bt+i}, v5, s[{sp}:{sp+1}] offset:{64*bt}")
    a("global_load_ushort v200, v6, s[52:53]")
    a("v_cmp_lt_u32 s[26:27], 31, v2")
    a("v_mov_b32 v8, 1.0")
    a(f"v_mov_b32 v9, {f32bits(128.0)}")
    a("v_cndmask_b32 v202, v8, v9, s[26:27]")
    a(f"v_mov_b32 v8, {f32bits(8.0)}")
    a(f"v_mov_b32 v9, {f32bits(1024.0)}")
    a("v_cndmask_b32 v203, v8, v9, s[26:27]")
    a("v_and_b32 v8, 31, v2")
    a(f"s_movk_i32 s7, {TS}")
    a("v_mul_lo_u32 v8, v8, s7")
    a(f"s_mul_i32 s7, s6, {32*TS}")
    a("v_add_u32 v204, s7, v8")
    a("v_lshrrev_b32 v8, 5, v2")
    a("v_lshl_add_u32 v205, v8, 6, v204")
    a("v_and_b32 v3, 15, v2")
    a("v_lshrrev_b32 v4, 4, v2")
    def bases(row, o0, o1, o2, t0, t1):
        a(f"v_and_b32 {t0}, 7, {row}")
        a(f"v_lshrrev_b32 {t1}, 3, {row}")
        a(f"v_lshl_add_u32 {o0}, {t1}, 7, {t0}")
        a(f"v_and_b32 {t0}, 3, {row}")
        a(f"v_lshlrev_b32 {t0}, 1, {t0}")
        a(f"v_bfe_u32 {t1}, {row}, 2, 1")
        a(f"v_lshl_add_u32 {t0}, {t1}, 7, {t0}")
        a(f"v_add_u32 {t0}, 0x100, {t0}")
        a(f"v_and_b32 {t1}, 1, {row}")
        a(f"v_lshlrev_b32 {t1}, 2, {t1}")
        a(f"v_bfe_u32 {o2}, {row}, 1, 2")
        a(f"v_lshl_add_u32 {t1}, {o2}, 7, {t1}")
        a(f"v_add_u32 {t1}, 0x200, {t1}")
        a(f"v_cmp_gt_u32 vcc, 8, {row}")
        a(f"v_cndmask_b32 {o1}, {t1}, {t0}, vcc")
        a(f"v_lshlrev_b32 {o2}, 7, {row}")
        a(f"v_add_u32 {o2}, 0x400, {o2}")
    bases('v3', 'v6', 'v12', 'v8', 'v9', 'v10')
    a(f"s_movk_i32 s10, {8*TS}")
    a("v_mul_lo_u32 v9, v4, s10")
    a("v_add_u32 v9, s7, v9")
    a("v_lshrrev_b32 v10, 2, v3")
    a("v_add_u32 v10, 25, v10")
    a("v_lshl_add_u32 v144, v10, 3, v9")
    a("v_and_b32 v10, 3, v3")
    a("v_add_u32 v10, 29, v10")
    a("v_lshl_add_u32 v145, v10, 3, v9")
    for (b, rc, ro) in (('v6', 146, 147), ('v12', 148, 149)):
        a(f"v_lshrrev_b32 v10, 7, {b}")
        a("v_add_u32 v10, 8, v10")
        a(f"v_lshl_add_u32 v{rc}, v10, 3, v9")
        a(f"v_and_b32 v10, 7, {b}")
        a(f"v_lshl_add_u32 v{ro}, v10, 3, v9")
    a("v_lshrrev_b32 v10, 7, v8")
    a("v_min_u32 v10, 16, v10")
    a("v_add_u32 v10, 8, v10")
    a("v_lshl_add_u32 v150, v10, 3, v9")
    for r in range(12): a(f"v_mov_b32 v{160+r}, 0")
    a("v_mov_b32 v159, s24")
    a("v_lshlrev_b32 v10, 2, v4")
    a("v_add_u32 v10, s9, v10")
    bases('v10', 'v44', 'v45', 'v46', 'v11', 'v13')
    a("s_lshl_b32 s11, s8, 12")
    a(f"s_add_u32 s11, s11, {TT}")
    a("s_movk_i32 s12, 0x7f")
    a("s_movk_i32 s13, 0x800")
    for b in range(3):
        a(f"v_lshl_add_u32 v{44+b}, v3, 3, v{44+b}")
        a(f"v_cvt_f32_u32 v{48+b}, v{44+b}")
        a(f"v_lshrrev_b32 v{48+b}, 16, v{48+b}")
        a(f"v_subrev_u32 v{48+b}, 0x4280, v{48+b}")
        a(f"v_med3_i32 v{48+b}, v{48+b}, v{44+b}, s12")
        a(f"v_mov_b32 v52, 1000")
        a(f"v_cmp_ge_u32 vcc, s13, v{44+b}")
        a(f"v_cndmask_b32 v{48+b}, v52, v{48+b}, vcc")
        a(f"v_lshlrev_b32 v{48+b}, 2, v{48+b}")
        a(f"v_add_u32 v{152+b}, s11, v{48+b}")
    a("s_waitcnt vmcnt(13)")
    a("v_lshlrev_b32 v14, 16, v14")
    a("v_mul_f32 v15, s20, v14")
    a("v_fma_f32 v16, v14, s20, -v15")
    a("v_fma_f32 v16, v14, s21, v16")
    a("v_exp_f32 v17, v15")
    a("v_mul_f32 v16, s22, v16")
    a("v_fma_f32 v17, v17, v16, v17")
    a("v_cvt_pk_bf16_f32 v17, v17, v17")
    a("v_lshlrev_b32 v201, 16, v17")
    a("ds_write_b128 v206, v[208:211]")
    a("s_waitcnt vmcnt(7)")
    stamp()
    def cmul(d, x, y):
        return [f"v_mul_f32 v{d}, v{x}, v{y}", f"v_mul_f32 v{d+1}, v{x}, v{y+1}",
                f"v_fma_f32 v{d}, -v{x+1}, v{y+1}, v{d}", f"v_fma_f32 v{d+1}, v{x+1}, v{y}, v{d+1}"]
    def build(bt):
        pb = 176 + 8 * bt
        for i in range(6): a(f"v_lshlrev_b32 v{pb+i}, 16, v{pb+i}")
        a(f"v_mul_f32 v8, v201, v{pb}")
        a(f"v_mul_f32 v9, v201, v{pb+1}")
        a("v_mul_f32 v8, s20, v8")
        a("v_mul_f32 v9, s23, v9")
        a(f"v_mul_f32 v10, v201, v{pb+2}")
        a(f"v_mul_f32 v11, v201, v{pb+3}")
        a(f"v_mul_f32 v28, v{pb+4}, v10")
        a(f"v_fma_f32 v28, -v{pb+5}, v11, v28")
        a(f"v_mul_f32 v29, v{pb+4}, v11")
        a(f"v_fma_f32 v29, v{pb+5}, v10, v29")
        for (ex, d, t) in (('v202', 32, 10), ('v203', 30, 12)):
            a(f"v_mul_f32 v{t}, v8, {ex}")
            a(f"v_mul_f32 v{t+1}, v9, {ex}")
        for (ex, d, t) in (('v202', 32, 10), ('v203', 30, 12)):
            a(f"v_exp_f32 v{t}, v{t}")
            a(f"v_fract_f32 v{t+1}, v{t+1}")
        for (ex, d, t) in (('v202', 32, 10), ('v203', 30, 12)):
            a(f"v_cos_f32 v{d}, v{t+1}")
            a(f"v_sin_f32 v{d+1}, v{t+1}")
        for (ex, d, t) in (('v202', 32, 10), ('v203', 30, 12)):
            a(f"v_mul_f32 v{d}, v{t}, v{d}")
            a(f"v_mul_f32 v{d+1}, v{t}, v{d+1}")
        Y = lambda k: 30 + 2 * k
        a("v_mov_b32 v12, 1.0"); a("v_mov_b32 v13, 0")
        for l in cmul(Y(2), Y(1), Y(1)): a(l)
        for l in cmul(46, 30, 30): a(l)
        for l in cmul(Y(3), Y(2), Y(1)): a(l)
        for l in cmul(Y(4), Y(2), Y(2)): a(l)
        for l in cmul(Y(6), Y(3), Y(3)): a(l)
        for l in cmul(Y(5), Y(4), Y(1)): a(l)
        for l in cmul(Y(7), Y(4), Y(3)): a(l)
        a("ds_write_b64 v205, v[12:13]")
        for k in range(1, 8): a(f"ds_write_b64 v205, v[{Y(k)}:{Y(k)+1}] offset:{8*k}")
        a("s_mov_b64 exec, s[26:27]")
        a(f"ds_write_b64 v204, v[30:31] offset:{8*16}")
        a(f"ds_write_b64 v204, v[46:47] offset:{8*24}")
        for k in range(1, 8):
            for l in cmul(48 + 2 * k, 30, Y(k)): a(l)
        for k in range(1, 8): a(f"ds_write_b64 v204, v[{48+2*k}:{49+2*k}] offset:{8*(16+k)}")
        a("s_not_b64 exec, s[26:27]")
        for l in cmul(50, 46, 30): a(l)
        for l in cmul(52, 46, 46): a(l)
        for l in cmul(58, 28, 30): a(l)
        for l in cmul(60, 28, 46): a(l)
        for l in cmul(54, 52, 52): a(l)
        for l in cmul(62, 28, 50): a(l)
        for l in cmul(56, 54, 52): a(l)
        a(f"ds_write_b64 v204, v[12:13] offset:{8*25}")
        for k in range(3): a(f"ds_write_b64 v204, v[{52+2*k}:{53+2*k}] offset:{8*(26+k)}")
        a(f"ds_write_b64 v204, v[28:29] offset:{8*29}")
        for k in range(3): a(f"ds_write_b64 v204, v[{58+2*k}:{59+2*k}] offset:{8*(30+k)}")
        a("s_mov_b64 exec, -1")
    def frag(setid, X, hl): return 80 + 32 * setid + 8 * X + 4 * hl
    def mfmas(setid):
        out = []
        for b in range(3):
            acc = f"v[{160+4*b}:{163+4*b}]"
            Fh = frag(setid, b + 1, 0); Fl = frag(setid, b + 1, 1); Gh = frag(setid, 0, 0); Gl = frag(setid, 0, 1)
            out.append(f"v_mfma_f32_16x16x32_bf16 {acc}, v[{Fh}:{Fh+3}], v[{Gh}:{Gh+3}], {acc}")
            out.append(f"v_mfma_f32_16x16x32_bf16 {acc}, v[{Fh}:{Fh+3}], v[{Gl}:{Gl+3}], {acc}")
            out.append(f"v_mfma_f32_16x16x32_bf16 {acc}, v[{Fl}:{Fl+3}], v[{Gh}:{Gh+3}], {acc}")
        return out
    def treads(idx):
        b = 16 + 14 * (idx % 3)
        off = idx * TS
        return [f"ds_read_b64 v[{b+2*k}:{b+2*k+1}], v{144+k} offset:{off}" for k in range(7)]
    def checkpoint():
        n = checkpoint.n; checkpoint.n += 1
        a("s_cmp_lg_u32 s15, 0")
        a(f"s_cbranch_scc1 K12_CP{n}_END")
        a("s_cmp_lg_u32 s6, 0")
        a(f"s_cbranch_scc1 K12_CP{n}_LDS")
        a("s_waitcnt vmcnt(0)")
        a("v_cmp_ne_u32 vcc, s68, v206")
        a(f"s_cbranch_vccz K12_CP{n}_GO")
        a("global_load_dword v206, v151, s[64:65] sc1")
        a(f"s_branch K12_CP{n}_END")
        a.label(f"K12_CP{n}_GO")
        a("v_mov_b32 v7, 1")
        a("ds_write_b32 v158, v7")
        a(f"s_branch K12_CP{n}_LD")
        a.label(f"K12_CP{n}_LDS")
        a("ds_read_b32 v7, v158")
        a("s_waitcnt lgkmcnt(0)")
        a("v_readfirstlane_b32 s13, v7")
        a("s_cmp_eq_u32 s13, 0")
        a(f"s_cbranch_scc1 K12_CP{n}_END")
        a.label(f"K12_CP{n}_LD")
        a("global_load_dwordx4 v[196:199], v156, s[16:17] sc1")
        for k in range(4):
            a(f"global_load_dwordx4 v[{208+4*k}:{211+4*k}], v157, s[64:65] offset:{16*k} sc1")
        a("s_mov_b32 s15, 1")
        a.label(f"K12_CP{n}_END")
        a("s_waitcnt lgkmcnt(0)")
    checkpoint.n = 0
    pend = []
    for bt in range(2):
        build(bt)
        for m in pend: a(m)
        pend = []
        a("s_waitcnt lgkmcnt(0)")
        if bt == 0:
            a("s_barrier")
            a("v_bfe_u32 v8, v2, 2, 2")
            a("v_lshl_add_u32 v8, v4, 3, v8")
            a("s_lshr_b32 s7, s6, 2")
            a("s_lshl_b32 s10, s7, 5")
            a("v_add_u32 v8, s10, v8")
            a("s_movk_i32 s10, 144")
            a("v_mul_lo_u32 v8, v8, s10")
            a("v_and_b32 v9, 3, v2")
            a("v_lshl_add_u32 v8, v9, 3, v8")
            a("s_lshl_b32 s10, s9, 5")
            a(f"s_add_u32 s10, s10, {XTL}")
            a("v_add_u32 v8, s10, v8")
            a("ds_read_b64_tr_b16 v[208:209], v8")
            a(f"ds_read_b64_tr_b16 v[210:211], v8 offset:{4*144}")
            a("s_lshl_b32 s10, s67, 6")
            a("s_lshl_b32 s13, s9, 4")
            a("s_add_u32 s10, s10, s13")
            a("v_add_u32 v9, s10, v3")
            a("v_lshlrev_b32 v9, 12, v9")
            a("v_lshl_add_u32 v9, v4, 4, v9")
            a("s_lshl_b32 s10, s66, 7")
            a("s_lshl_b32 s13, s7, 6")
            a("s_add_u32 s10, s10, s13")
            a(f"s_add_u32 s10, s10, {hex(WS_XT)}")
            a("v_add_u32 v9, s10, v9")
            a("s_waitcnt lgkmcnt(0)")
            a("global_store_dwordx4 v9, v[208:211], s[64:65] sc1")
            a("v_mov_b32 v207, 0")
            a("global_load_dword v207, v207, s[62:63] sc1")
        for x in treads(0): a(x)
        for x in treads(1): a(x)
        for ss in range(2):
            body = []
            st = ss
            for e in range(4):
                idx = 4 * ss + e
                if idx < 6:
                    body += treads(idx + 2)
                    body.append("s_waitcnt lgkmcnt(14)")
                elif idx == 6:
                    body.append("s_waitcnt lgkmcnt(7)")
                else:
                    body.append("s_waitcnt lgkmcnt(0)")
                if bt == 1 and e == 2: body.append("@CP")
                b = 16 + 14 * (idx % 3)
                P, Q, C0, O0, C1, O1, C2 = [b + 2 * k for k in range(7)]
                body += [f"v_mul_f32 v58, v{P}, v{Q}", f"v_mul_f32 v59, v{P}, v{Q+1}",
                         f"v_mul_f32 v60, v{C0}, v{O0}", f"v_mul_f32 v61, v{C0}, v{O0+1}",
                         f"v_mul_f32 v62, v{C1}, v{O1}", f"v_mul_f32 v63, v{C1}, v{O1+1}",
                         f"v_fma_f32 v58, -v{P+1}, v{Q+1}, v58", f"v_fma_f32 v59, -v{P+1}, v{Q}, -v59",
                         f"v_fma_f32 v60, -v{C0+1}, v{O0+1}, v60", f"v_fma_f32 v61, v{C0+1}, v{O0}, v61",
                         f"v_fma_f32 v62, -v{C1+1}, v{O1+1}, v62", f"v_fma_f32 v63, v{C1+1}, v{O1}, v63"]
                vals = [(58, 59), (60, 61), (62, 63), (C2, C2 + 1)]
                order = [3, 0, 1, 2]
                for X in order:
                    r, i = vals[X]
                    body.append(f"v_perm_b32 v{frag(st,X,0)+e}, v{i}, v{r}, s25")
                    body.append(f"v_and_b32 v{66+2*X}, v159, v{r}")
                    body.append(f"v_and_b32 v{67+2*X}, v159, v{i}")
                for X in order:
                    r, i = vals[X]
                    body.append(f"v_sub_f32 v{66+2*X}, v{r}, v{66+2*X}")
                    body.append(f"v_sub_f32 v{67+2*X}, v{i}, v{67+2*X}")
                for X in order:
                    body.append(f"v_perm_b32 v{frag(st,X,1)+e}, v{67+2*X}, v{66+2*X}, s25")
            if pend:
                body = interleave(body, pend, start=8)
            for x in body:
                if x == "@CP": checkpoint()
                else: a(x)
            pend = mfmas(st)
            if bt == 0 and ss == 0:
                a("s_waitcnt vmcnt(0)")
                gettag("K12_T1")
                a("v_mov_b32 v7, 1")
                a(f"v_mov_b32 v15, {CNT}")
                a("s_mov_b64 exec, 1")
                a("ds_add_rtn_u32 v7, v15, v7")
                a("s_waitcnt lgkmcnt(0)")
                a("v_readfirstlane_b32 s7, v7")
                a("s_cmp_lg_u32 s7, 7")
                a("s_cbranch_scc1 K12_NOSIG1")
                a("v_mov_b32 v7, s68")
                a("s_lshl_b32 s7, s3, 7")
                a(f"s_add_u32 s7, s7, {hex(WS_FL)}")
                a("v_mov_b32 v15, s7")
                a("global_store_dword v15, v7, s[64:65] sc1")
                a.label("K12_NOSIG1")
                a("s_mov_b64 exec, -1")

            if bt == 0 and ss == 0:
                a("s_lshl_b32 s5, s4, 12")
                a(f"s_mul_i32 s10, s8, {CH}")
                a("v_and_b32 v155, 0xff, v0")
                a("v_lshlrev_b32 v156, 4, v155")
                a("v_lshlrev_b32 v157, 2, v156")
                a("s_add_u32 s16, s64, s5")
                a("s_addc_u32 s17, s65, 0")
                add64(a, 30, 16, WS_HT)
                a(f"s_add_u32 s16, s16, {hex(WS_XT)}")
                a("s_addc_u32 s17, s17, 0")
                a(f"v_mov_b32 v158, {CNT+4}")
                a("s_mov_b32 s15, 0")
                a("s_lshr_b32 s14, s4, 6")
                a("s_lshl_b32 s14, s14, 5")
                a("v_and_b32 v151, 31, v2")
                a("v_add_u32 v8, s14, v151")
                a("v_add_u32 v151, 224, v151")
                a("v_cmp_gt_u32 vcc, 32, v2")
                a("v_cndmask_b32 v151, v151, v8, vcc")
                a("v_lshlrev_b32 v151, 7, v151")
                a(f"v_add_u32 v151, {hex(WS_FL)}, v151")
                a("v_mov_b32 v206, 0")
            if (bt, ss) in ((0, 1), (1, 0)):
                checkpoint()
    for m in pend: a(m)
    a("s_mov_b32 s14, 0")
    a.label("K12_SPIN")
    checkpoint()
    a("s_cmp_lg_u32 s15, 0")
    a("s_cbranch_scc1 K12_LDDONE")
    a("s_sleep 2")
    a("s_add_u32 s14, s14, 1")
    a("s_cmp_lt_u32 s14, 50000")
    a("s_cbranch_scc1 K12_SPIN")
    a.label("K12_LDDONE")
    stamp()
    a("s_mul_i32 s7, s6, 3072")
    a(f"s_add_u32 s7, s7, {PART}")
    a("v_lshlrev_b32 v9, 2, v2")
    a("v_add_u32 v10, s7, v9")
    for r in range(12):
        a(f"ds_write_b32 v10, v{160+r} offset:{r*256}")
    a("v_mov_b32 v3, v155")
    a("v_mov_b32 v4, v156")
    a(f"s_mul_i32 s7, s8, {LS}")
    a(f"s_add_u32 s7, s7, {LIN}")
    a("v_add_u32 v5, s7, v4")
    a("v_mov_b32 v24, 0"); a("v_mov_b32 v25, 0"); a("v_mov_b32 v26, 0"); a("v_mov_b32 v27, 0")
    a("v_cmp_gt_u32 vcc, 2, v3")
    a("s_and_saveexec_b64 s[28:29], vcc")
    a("ds_write_b128 v5, v[24:27]")
    a("ds_write_b128 v5, v[24:27] offset:4128")
    a("s_mov_b64 exec, s[28:29]")
    def ucalc(xr, sr, out, n):
        for k in range(n):
            t = 44 + 3 * (k & 1)
            a(f"v_lshlrev_b32 v{t}, 16, v{xr+k}")
            a(f"v_and_b32 v{t+1}, s24, v{xr+k}")
            a(f"v_sub_f32 v{t}, v{t}, v{sr+4*k}")
            a(f"v_sub_f32 v{t+1}, v{t+1}, v{sr+2+4*k}")
            a(f"v_cvt_pk_bf16_f32 v{t+2}, v{t}, v{t+1}")
            a(f"v_lshlrev_b32 v{t}, 16, v{t+2}")
            a(f"v_and_b32 v{t+1}, s24, v{t+2}")
            a(f"v_mul_f32 v{t}, v{t}, v{sr+1+4*k}")
            a(f"v_mul_f32 v{t+1}, v{t+1}, v{sr+3+4*k}")
            a(f"v_cvt_pk_bf16_f32 v{out+k}, v{t}, v{t+1}")
    a("s_waitcnt vmcnt(0)")
    ucalc(196, 208, 192, 4)
    a("ds_write_b128 v5, v[192:195] offset:32")
    a("v_lshlrev_b32 v10, 3, v3")
    a("v_sub_u32 v10, 0x7ff, v10")
    for e in range(8):
        a(f"v_subrev_u32 v{44+e}, {e}, v10")
        a(f"v_cvt_f32_u32 v{52+e}, v{44+e}")
        a(f"v_cvt_pk_bf16_f32 v{52+e}, v{52+e}, v{52+e}")
        a(f"v_and_b32 v{52+e}, 0xffff, v{52+e}")
        a(f"v_subrev_u32 v{52+e}, 0x4280, v{52+e}")
        a(f"v_med3_i32 v{52+e}, v{52+e}, v{44+e}, s12")
        a(f"v_lshlrev_b32 v{52+e}, 2, v{52+e}")
        a(f"v_add_u32 v{52+e}, s11, v{52+e}")
    a("s_waitcnt lgkmcnt(0)")
    a("s_barrier")
    stamp()
    a("s_mul_i32 s7, s8, 12288")
    a("s_lshl_b32 s13, s9, 8")
    a("s_add_u32 s7, s7, s13")
    a(f"s_add_u32 s7, s7, {PART}")
    a("v_add_u32 v9, s7, v9")
    for b in range(3):
        for w in range(4):
            a(f"ds_read_b32 v{80+4*b+w}, v9 offset:{w*3072 + b*1024}")
    a("v_add_u32 v6, s10, v4")
    a("v_mov_b32 v24, 0"); a("v_mov_b32 v25, 0"); a("v_mov_b32 v26, 0"); a("v_mov_b32 v27, 0")
    a("v_cmp_gt_u32 vcc, 32, v3")
    a("s_and_saveexec_b64 s[28:29], vcc")
    a("ds_write_b128 v6, v[24:27] offset:4096")
    a("ds_write_b128 v6, v[24:27] offset:8704")
    a("s_mov_b64 exec, s[28:29]")
    a("ds_read_b128 v[16:19], v5")
    a("ds_read_b128 v[20:23], v5 offset:16")
    a("ds_read_b128 v[208:211], v5 offset:4096")
    a("ds_read_b128 v[212:215], v5 offset:4112")
    a("s_waitcnt lgkmcnt(0)")
    for b in range(3):
        a(f"v_add_f32 v{80+4*b}, v{80+4*b}, v{81+4*b}")
        a(f"v_add_f32 v{82+4*b}, v{82+4*b}, v{83+4*b}")
        a(f"v_add_f32 v{80+4*b}, v{80+4*b}, v{82+4*b}")
        a(f"ds_write_b32 v{152+b}, v{80+4*b}")
    def copies(c0, off):
        for k in range(4): a(f"v_mov_b32 v{24+k}, v{c0+k+1}")
        for k in range(4): a(f"v_alignbyte_b32 v{30+k}, v{c0+k+1}, v{c0+k}, 2")
        for k in range(4): a(f"v_alignbyte_b32 v{38+k}, v{c0+k+2}, v{c0+k+1}, 2")
        src = {0: c0, 2: 24, 1: 30, 3: 38}
        for s in range(4):
            a(f"ds_write_b128 v6, v[{src[s]}:{src[s]+3}] offset:{UB + s*CS + OS4[s] + off}")
    copies(16, 0)
    a("s_cmp_lg_u32 s9, 0")
    a("s_cbranch_scc1 K12_NOC2")
    a("v_cmp_gt_u32 vcc, 2, v3")
    a("s_and_saveexec_b64 s[28:29], vcc")
    copies(208, 4096)
    a("s_mov_b64 exec, s[28:29]")
    a.label("K12_NOC2")
    a("s_waitcnt lgkmcnt(0)")
    a("s_barrier")
    stamp()
    for e in range(8):
        a(f"ds_read_b32 v{60+e}, v{52+e}")
    a("v_and_b32 v7, 15, v2")
    a("v_lshrrev_b32 v8, 4, v2")
    a("v_lshlrev_b32 v9, 5, v7")
    a("v_lshlrev_b32 v10, 4, v8")
    a("v_sub_u32 v9, v10, v9")
    a("s_lshl_b32 s7, s9, 6")
    a("s_sub_u32 s14, s10, s7")
    a("s_add_u32 s13, s14, 928")
    a("v_add_u32 v9, s13, v9")
    a("v_add_u32 v11, 1, v7")
    a("v_and_b32 v12, 3, v11")
    a("v_lshrrev_b32 v13, 2, v11")
    a("v_lshl_add_u32 v13, v8, 1, v13")
    a("v_lshlrev_b32 v13, 3, v13")
    a("v_lshlrev_b32 v14, 3, v12")
    a("s_mov_b32 s13, 0xa0704000")
    a("v_lshrrev_b32 v14, v14, s13")
    a("v_and_b32 v14, 0xff, v14")
    a("v_add_u32 v13, v13, v14")
    a(f"s_movk_i32 s13, {CS}")
    a("v_mul_lo_u32 v12, v12, s13")
    a("v_add_u32 v13, v13, v12")
    a(f"s_add_u32 s13, s14, {UB + 448}")
    a("v_add_u32 v10, s13, v13")
    a("s_waitcnt lgkmcnt(0)")
    for k in range(4):
        a(f"v_cvt_pk_bf16_f32 v{68+k}, v{60+2*k}, v{61+2*k}")
        a(f"v_lshlrev_b32 v76, 16, v{68+k}")
        a(f"v_and_b32 v77, s24, v{68+k}")
        a(f"v_sub_f32 v76, v{60+2*k}, v76")
        a(f"v_sub_f32 v77, v{61+2*k}, v77")
        a(f"v_cvt_pk_bf16_f32 v{72+k}, v76, v77")
    a("ds_write_b128 v6, v[68:71]")
    a("ds_write_b128 v6, v[72:75] offset:4608")
    for r in range(32): a(f"v_mov_b32 v{160+r}, 0")
    a("s_waitcnt lgkmcnt(0)")
    a("s_barrier")
    stamp()
    for gi in range(2):
        if gi == 1:
            a("v_subrev_u32 v9, 0x100, v9")
            a("v_subrev_u32 v10, 0x100, v10")
        for k in range(8):
            a(f"ds_read_b64 v[{128+4*k}:{129+4*k}], v10 offset:{512*k}")
            a(f"ds_read_b64 v[{130+4*k}:{131+4*k}], v10 offset:{512*k+8}")
            a(f"ds_read_b128 v[{64+8*k}:{67+8*k}], v9 offset:{512*(7-k)}")
            a(f"ds_read_b128 v[{68+8*k}:{71+8*k}], v9 offset:{512*(7-k)+4608}")
        for k in range(8):
            a(f"s_waitcnt lgkmcnt({min(15, 32-4*(k+1))})")
            pairs = [(k, dl) for dl in range(k + 1)] + [(t, k) for t in range(k)]
            for (t, dl) in pairs:
                if t + dl > 7: continue
                seg = t + dl
                acc = f"v[{160+4*seg}:{163+4*seg}]"
                a(f"v_mfma_f32_16x16x32_bf16 {acc}, v[{64+8*t}:{67+8*t}], v[{128+4*dl}:{131+4*dl}], {acc}")
                a(f"v_mfma_f32_16x16x32_bf16 {acc}, v[{68+8*t}:{71+8*t}], v[{128+4*dl}:{131+4*dl}], {acc}")
    a("s_barrier")
    stamp()
    a("s_lshl_b32 s7, s6, 13")
    a("v_lshlrev_b32 v9, 2, v2")
    a("v_add_u32 v9, s7, v9")
    for r in range(32):
        a(f"ds_write_b32 v9, v{160+r} offset:{256*r}")
    a("v_lshrrev_b32 v9, 5, v3")
    a("v_bfe_u32 v10, v3, 1, 4")
    a("v_and_b32 v11, 3, v10")
    a("v_lshl_add_u32 v9, v9, 2, v11")
    a("v_lshlrev_b32 v9, 8, v9")
    a("v_lshrrev_b32 v10, 2, v10")
    a("v_lshl_add_u32 v9, v10, 6, v9")
    a("v_and_b32 v11, 1, v3")
    a("v_lshl_add_u32 v9, v11, 5, v9")
    a("s_lshl_b32 s7, s8, 15")
    a("v_add_u32 v9, s7, v9")
    a("v_lshlrev_b32 v200, 16, v200")
    for k in range(4):
        a(f"v_lshlrev_b32 v25, 16, v{192+k}")
        a(f"v_and_b32 v26, s24, v{192+k}")
        a(f"v_mul_f32 v25, v25, v200")
        a(f"v_mul_f32 v26, v26, v200")
        a(f"v_cvt_pk_bf16_f32 v27, v25, v26")
        a(f"v_lshlrev_b32 v{208+2*k}, 16, v27")
        a(f"v_and_b32 v{209+2*k}, s24, v27")
        a(f"v_lshlrev_b32 v{216+2*k}, 16, v{196+k}")
        a(f"v_and_b32 v{217+2*k}, s24, v{196+k}")
    a("s_waitcnt lgkmcnt(0)")
    a("s_barrier")
    for w in range(4):
        a(f"ds_read_b128 v[{64+8*w}:{67+8*w}], v9 offset:{8192*w}")
        a(f"ds_read_b128 v[{68+8*w}:{71+8*w}], v9 offset:{8192*w+16}")
    a("s_waitcnt lgkmcnt(0)")
    for e in range(8):
        a(f"v_add_f32 v{64+e}, v{64+e}, v{72+e}")
        a(f"v_add_f32 v{80+e}, v{80+e}, v{88+e}")
        a(f"v_add_f32 v{64+e}, v{64+e}, v{80+e}")
    for k in range(4):
        a(f"v_cvt_pk_bf16_f32 v24, v{64+2*k}, v{65+2*k}")
        a(f"v_lshlrev_b32 v25, 16, v24")
        a(f"v_and_b32 v26, s24, v24")
        a(f"v_add_f32 v25, v25, v{208+2*k}")
        a(f"v_add_f32 v26, v26, v{209+2*k}")
        a(f"v_cvt_pk_bf16_f32 v24, v25, v26")
        a(f"v_lshlrev_b32 v25, 16, v24")
        a(f"v_and_b32 v26, s24, v24")
        a(f"v_add_f32 v25, v25, v{216+2*k}")
        a(f"v_add_f32 v26, v26, v{217+2*k}")
        a(f"v_cvt_pk_bf16_f32 v{32+k}, v25, v26")
    a("global_store_dwordx4 v4, v[32:35], s[30:31] sc1")
    a("s_endpgm")
    a.label("K12_TR")
    a.lines.append("; STAMP0")
    ST = 928
    a("v_mov_b32 v7, 0")
    a(f"v_mov_b32 v15, {CNT}")
    a("ds_write_b32 v15, v7")
    a("ds_write_b32 v15, v7 offset:4")
    a("s_mov_b32 s3, s2")
    a("s_lshl_b32 s3, s3, 6")
    a("v_lshrrev_b32 v3, 3, v0")
    a("v_and_b32 v4, 7, v0")
    a("v_add_u32 v5, s3, v3")
    a("s_movk_i32 s7, 896")
    a("v_mul_lo_u32 v6, v5, s7")
    a("v_lshl_add_u32 v6, v4, 4, v6")
    a("s_waitcnt lgkmcnt(0)")
    a("s_or_b32 s7, s2, s6")
    a("s_cmp_lg_u32 s7, 0")
    a("s_cbranch_scc1 K12_NOTAG")
    a("s_memrealtime s[68:69]")
    a("s_waitcnt lgkmcnt(0)")
    a("s_or_b32 s68, s68, 1")
    a("v_mov_b32 v7, s68")
    a("v_mov_b32 v15, 0")
    a("global_store_dword v15, v7, s[62:63] sc1")
    a("v_mov_b32 v15, 0x20000")
    a("global_store_dword v15, v7, s[64:65] sc1")
    a.label("K12_NOTAG")
    a("s_barrier")
    for i in range(7):
        a(f"global_load_dwordx4 v[{16+4*i}:{19+4*i}], v6, s[36:37] offset:{128*i}")
    a("s_waitcnt vmcnt(0)")
    stamp()
    a("v_mov_b32 v207, 0")
    a("global_load_dword v207, v207, s[62:63] sc1")
    a.label("K12_TRX")
    a("v_mov_b32 v44, s24")
    for i in range(7):
        for k in range(4):
            a(f"v_lshlrev_b32 v{48+8*i+2*k}, 16, v{16+4*i+k}")
            a(f"v_and_b32 v{49+8*i+2*k}, v44, v{16+4*i+k}")
    a("v_add_f32 v8, v48, v49")
    a("v_add_f32 v9, v50, v51")
    for k in range(2, 28):
        a(f"v_add_f32 v{8+(k&1)}, v{8+(k&1)}, v{48+2*k}")
        a(f"v_add_f32 v{8+(k&1)}, v{8+(k&1)}, v{49+2*k}")
    a("v_add_f32 v8, v8, v9")
    def red8(r):
        a(f"v_add_f32_dpp {r}, {r}, {r} quad_perm:[1,0,3,2] row_mask:0xf bank_mask:0xf")
        a(f"v_add_f32_dpp {r}, {r}, {r} quad_perm:[2,3,0,1] row_mask:0xf bank_mask:0xf")
        a(f"v_add_f32_dpp {r}, {r}, {r} row_half_mirror row_mask:0xf bank_mask:0xf")
    red8('v8')
    a(f"s_mov_b32 s8, {f32bits(1.0/448)}")
    a("v_mul_f32 v8, s8, v8")
    a("v_mov_b32 v10, 0")
    a("v_mov_b32 v11, 0")
    for k in range(56):
        a(f"v_sub_f32 v{12+(k&1)}, v{48+k}, v8")
        a(f"v_fma_f32 v{10+(k&1)}, v{12+(k&1)}, v{12+(k&1)}, v{10+(k&1)}")
    a("v_add_f32 v10, v10, v11")
    red8('v10')
    a("v_mul_f32 v10, s8, v10")
    a("v_cvt_pk_bf16_f32 v11, v8, v10")
    a("v_lshlrev_b32 v8, 16, v11")
    a("v_and_b32 v10, s24, v11")
    a(f"v_add_f32 v10, {f32bits(1e-5)}, v10")
    a("v_cvt_pk_bf16_f32 v10, v10, v10")
    a("v_lshlrev_b32 v10, 16, v10")
    a("v_sqrt_f32 v10, v10")
    a("v_cvt_pk_bf16_f32 v10, v10, v10")
    a("v_lshlrev_b32 v10, 16, v10")
    a("v_rcp_f32 v9, v10")
    a("v_lshlrev_b32 v5, 3, v5")
    a("v_cmp_eq_u32 vcc, 0, v4")
    a("s_and_saveexec_b64 s[28:29], vcc")
    a("global_store_dwordx2 v5, v[8:9], s[64:65] sc1")
    a("s_mov_b64 exec, s[28:29]")
    a("s_waitcnt vmcnt(0)")
    stamp()
    gettag("K12_T2")
    a("v_mov_b32 v7, 1")
    a(f"v_mov_b32 v15, {CNT}")
    a("s_mov_b64 exec, 1")
    a("ds_add_rtn_u32 v7, v15, v7")
    a("s_waitcnt lgkmcnt(0)")
    a("v_readfirstlane_b32 s7, v7")
    a("s_cmp_lg_u32 s7, 7")
    a("s_cbranch_scc1 K12_NOSIG")
    a("v_mov_b32 v7, s68")
    a("s_add_u32 s7, s2, 224")
    a("s_lshl_b32 s7, s7, 7")
    a(f"s_add_u32 s7, s7, {hex(WS_FL)}")
    a("v_mov_b32 v15, s7")
    a("global_store_dword v15, v7, s[64:65] sc1")
    a.label("K12_NOSIG")
    a("s_mov_b64 exec, -1")
    a("s_barrier")
    a("s_lshl_b32 s3, s2, 3")
    a("s_add_u32 s3, s3, s6")
    a("s_mul_i32 s7, s6, 5120")
    a("v_lshrrev_b32 v3, 3, v2")
    a("v_and_b32 v4, 7, v2")
    a("s_movk_i32 s8, 3584")
    a("v_mul_lo_u32 v5, v3, s8")
    a("v_lshl_add_u32 v5, v4, 4, v5")
    a("s_movk_i32 s8, 896")
    a("v_mul_lo_u32 v11, v3, s8")
    a("v_lshl_add_u32 v11, v4, 4, v11")
    a("s_movk_i32 s8, 160")
    a("v_mul_lo_u32 v6, v3, s8")
    a("v_lshl_add_u32 v6, v4, 4, v6")
    a("v_add_u32 v6, s7, v6")
    a("v_lshrrev_b32 v7, 4, v2")
    a("v_bfe_u32 v8, v2, 2, 2")
    a("v_lshl_add_u32 v12, v7, 3, v8")
    a("v_lshl_add_u32 v7, v7, 2, v8")
    a("v_mul_lo_u32 v7, v7, s8")
    a("v_mul_lo_u32 v12, v12, s8")
    a("v_and_b32 v8, 3, v2")
    a("v_lshl_add_u32 v7, v8, 4, v7")
    a("v_add_u32 v7, s7, v7")
    a("v_lshl_add_u32 v12, v8, 3, v12")
    a("v_add_u32 v12, s7, v12")
    a("v_lshlrev_b32 v8, 4, v2")
    add64(a, 34, 64, WS_W1F)
    add64(a, 28, 64, WS_W2F)
    a("s_add_u32 s4, s3, 256")
    a("s_min_u32 s4, s4, 391")
    for j, su in enumerate(('s3', 's4')):
        a(f"s_mul_i32 s{40+4*j}, {su}, 9363")
        a(f"s_lshr_b32 s{40+4*j}, s{40+4*j}, 18")
        a(f"s_mul_i32 s{41+4*j}, s{40+4*j}, 28")
        a(f"s_sub_u32 s{41+4*j}, {su}, s{41+4*j}")
        a(f"s_mul_i32 s{42+4*j}, {su}, 9363")
        a(f"s_lshr_b32 s{42+4*j}, s{42+4*j}, 16")
        a(f"s_mul_i32 s{43+4*j}, s{42+4*j}, 7")
        a(f"s_sub_u32 s{43+4*j}, {su}, s{43+4*j}")
    for j in range(2):
        a(f"s_mul_i32 s11, s{40+4*j}, 114688")
        a(f"s_lshl_b32 s12, s{41+4*j}, 7")
        a("s_add_u32 s11, s11, s12")
        a("v_add_u32 v9, s11, v5")
        for i in range(4):
            if i: a(f"v_add_u32 v9, {8*3584}, v9")
            a(f"global_load_dwordx4 v[{64+16*j+4*i}:{67+16*j+4*i}], v9, s[56:57]")
    for j in range(2):
        a(f"s_mul_i32 s11, s{42+4*j}, 28672")
        a(f"s_lshl_b32 s12, s{43+4*j}, 7")
        a("s_add_u32 s11, s11, s12")
        a("v_add_u32 v9, s11, v11")
        for i in range(4):
            if i: a(f"v_add_u32 v9, {8*896}, v9")
            a(f"global_load_dwordx4 v[{96+16*j+4*i}:{99+16*j+4*i}], v9, s[58:59]")
    nst = 0
    for j in range(2):
        a(f"s_waitcnt vmcnt({12-4*j + nst})")
        for i in range(4):
            a(f"ds_write_b128 v6, v[{64+16*j+4*i}:{67+16*j+4*i}] offset:{8*160*i}")
        a("s_waitcnt lgkmcnt(0)")
        for fgl in range(2):
            for T in range(2):
                b = 128 + 16 * j + 8 * fgl + 4 * T
                a(f"ds_read_b64_tr_b16 v[{b}:{b+1}], v7 offset:{64*fgl+8*T}")
                a(f"ds_read_b64_tr_b16 v[{b+2}:{b+3}], v7 offset:{64*fgl+8*T+16*160}")
        a(f"s_mul_i32 s11, s{41+4*j}, 57344")
        a(f"s_lshl_b32 s12, s{40+4*j}, 11")
        a("s_add_u32 s11, s11, s12")
        a("v_add_u32 v9, s11, v8")
        a("v_add_u32 v10, 28672, v9")
        a("s_waitcnt lgkmcnt(0)")
        b = 128 + 16 * j
        a(f"global_store_dwordx4 v9, v[{b}:{b+3}], s[34:35] sc1")
        a(f"global_store_dwordx4 v9, v[{b+4}:{b+7}], s[34:35] offset:1024 sc1")
        a(f"global_store_dwordx4 v10, v[{b+8}:{b+11}], s[34:35] sc1")
        a(f"global_store_dwordx4 v10, v[{b+12}:{b+15}], s[34:35] offset:1024 sc1")
        nst += 4
    for j in range(2):
        a(f"s_waitcnt vmcnt({4-4*j + nst})")
        for i in range(4):
            a(f"ds_write_b128 v6, v[{96+16*j+4*i}:{99+16*j+4*i}] offset:{8*160*i}")
        a("s_waitcnt lgkmcnt(0)")
        for T in range(4):
            b = 160 + 16 * j + 4 * T
            a(f"ds_read_b64_tr_b16 v[{b}:{b+1}], v12 offset:{32*T}")
            a(f"ds_read_b64_tr_b16 v[{b+2}:{b+3}], v12 offset:{32*T+4*160}")
        a(f"s_mul_i32 s11, s{43+4*j}, 229376")
        a(f"s_lshl_b32 s12, s{42+4*j}, 12")
        a("s_add_u32 s11, s11, s12")
        a("v_add_u32 v9, s11, v8")
        a("s_waitcnt lgkmcnt(0)")
        for T in range(4):
            a(f"global_store_dwordx4 v9, v[{160+16*j+4*T}:{163+16*j+4*T}], s[28:29] offset:{1024*T} sc1")
        nst += 4
    a.label("K12_END")
    a("s_endpgm")
    return a.finalize(), 232, XTL + 9216

if __name__ == '__main__':
    ks = [('k12_kernel', gen_k12, 256, 512), ('k3_kernel', gen_k3, 256, 512), ('k4_kernel', gen_k4, 224, 512)]
    open('cdna_kernels/' + NAME + '.s', 'w').write(build(ks))
```

```python
from gen12 import *

WS_TAG = 0x20000
WS_FL2 = 0x30000
def gen_k34():
    a = Asm()
    PART = 0; FIN = 4096; AT = 4608
    RS = 272; WSZ = 64 * RS
    CNT2 = 8 * WSZ
    stamp = lambda: a.lines.append("; STAMP")
    a("s_cmp_ge_u32 s2, 256")
    a("s_cbranch_scc1 K34_END")
    a("s_load_dwordx2 s[32:33], s[0:1], 112")
    a("s_cmp_ge_u32 s2, 224")
    a("s_cbranch_scc1 K34_PF")
    a("s_load_dwordx2 s[30:31], s[0:1], 96")
    a("v_lshrrev_b32 v1, 6, v0")
    a("v_readfirstlane_b32 s6, v1")
    a("v_and_b32 v2, 63, v0")
    tile_ids(a)
    a("s_lshl_b32 s5, s3, 7")
    a("v_and_b32 v3, 7, v0")
    a("v_lshrrev_b32 v4, 3, v0")
    a("v_lshlrev_b32 v5, 4, v3")
    a("v_add_u32 v5, s5, v5")
    a("v_lshl_add_u32 v6, v4, 12, v5")
    a("v_lshlrev_b32 v7, 1, v0")
    a("v_add_u32 v7, s5, v7")
    a("v_mov_b32 v8, 0")
    a(f"v_mov_b32 v9, {CNT2}")
    a("ds_write_b32 v9, v8")
    a("ds_write_b32 v9, v8 offset:4")
    a("s_waitcnt lgkmcnt(0)")
    a(f"s_add_u32 s12, s32, {hex(WS_HT)}")
    a("s_addc_u32 s13, s33, 0")
    a("s_mov_b32 s14, 0x1c0000")
    a("s_mov_b32 s15, 0x00020000")
    a(f"s_add_u32 s16, s32, {hex(WS_W1F)}")
    a("s_addc_u32 s17, s33, 0")
    a("s_mov_b32 s18, 0x188000")
    a("s_mov_b32 s19, 0x00020000")
    a(f"s_load_dword s60, s[32:33], {hex(WS_TAG)}")
    for i in range(7):
        a(f"s_mov_b32 s{20+i}, {hex(i*262144)}")
    for i in range(7):
        a(f"buffer_load_dwordx4 v[{16+4*i}:{19+4*i}], v6, s[12:15], s{20+i} offen")
    a("buffer_load_dwordx4 v[44:47], v5, s[12:15], 0 offen")
    a("buffer_load_ushort v8, v7, s[12:15], 0 offen")
    a("s_lshl_b32 s7, s4, 3")
    a("s_add_u32 s7, s7, s6")
    a("s_mul_i32 s8, s7, 28672")
    a("v_lshlrev_b32 v9, 4, v2")
    a("v_add_u32 v10, s8, v9")
    for i in range(8):
        a(f"s_mov_b32 s{34+i}, {i*4096}")
    wl = [f"buffer_load_dwordx4 v[{128+4*k}:{131+4*k}], v10, s[16:19], s{34+k//4} offen offset:{(k%4)*1024}" for k in range(28)]
    a("s_mov_b32 s44, 0xffff0000")
    a("v_mov_b32 v248, s44")
    a("s_waitcnt vmcnt(1)")
    stamp()
    for k in range(4):
        a(f"v_lshlrev_b32 v{104+2*k}, 16, v{44+k}")
        a(f"v_and_b32 v{105+2*k}, s44, v{44+k}")
    for r in range(16): a(f"v_mov_b32 v{112+r}, 0")
    for i in range(7):
        for k in range(4):
            a(f"v_lshlrev_b32 v{48+8*i+2*k}, 16, v{16+4*i+k}")
            a(f"v_and_b32 v{49+8*i+2*k}, v248, v{16+4*i+k}")
        for r in range(8):
            a(f"v_sub_f32 v{12+(r&3)}, v{48+8*i+r}, v{104+r}")
            a(f"v_add_f32 v{112+r}, v{112+r}, v{12+(r&3)}")
            a(f"v_fma_f32 v{120+r}, v{12+(r&3)}, v{12+(r&3)}, v{120+r}")
        a(wl[2*i]); a(wl[2*i+1])
    for k in range(8): a(f"v_permlane32_swap_b32 v{112+k}, v{120+k}")
    for k in range(8): a(f"v_add_f32 v{112+k}, v{112+k}, v{120+k}")
    for k in range(4): a(f"v_permlane16_swap_b32 v{112+k}, v{116+k}")
    for k in range(4): a(f"v_add_f32 v{112+k}, v{112+k}, v{116+k}")
    for k in range(4): a(f"v_add_f32_dpp v{112+k}, v{112+k}, v{112+k} row_ror:8 row_mask:0xf bank_mask:0xf")
    a("v_lshrrev_b32 v12, 5, v2")
    a("v_bfe_u32 v13, v2, 4, 1")
    a("v_lshlrev_b32 v14, 5, v3")
    a("v_lshl_add_u32 v14, v13, 4, v14")
    a("v_lshl_add_u32 v14, v12, 8, v14")
    a("s_lshl_b32 s9, s6, 9")
    a("v_add_u32 v14, s9, v14")
    a(f"ds_write_b128 v14, v[112:115] offset:{PART}")
    a("s_waitcnt lgkmcnt(0)")
    a("s_barrier")
    stamp()
    a("s_cmp_lg_u32 s6, 0")
    a("s_cbranch_scc1 K34_SKIP")
    a("v_lshlrev_b32 v12, 2, v2")
    for w in range(8):
        a(f"ds_read_b32 v{112+w}, v12 offset:{PART + 512*w}")
        a(f"ds_read_b32 v{120+w}, v12 offset:{PART + 512*w + 256}")
    a("s_waitcnt lgkmcnt(0)")
    for st in (112, 120):
        a(f"v_add_f32 v{st}, v{st}, v{st+1}")
        a(f"v_add_f32 v{st+2}, v{st+2}, v{st+3}")
        a(f"v_add_f32 v{st+4}, v{st+4}, v{st+5}")
        a(f"v_add_f32 v{st+6}, v{st+6}, v{st+7}")
        a(f"v_add_f32 v{st}, v{st}, v{st+2}")
        a(f"v_add_f32 v{st+4}, v{st+4}, v{st+6}")
        a(f"v_add_f32 v{st}, v{st}, v{st+4}")
    a(f"s_mov_b32 s9, {f32bits(1.0/448)}")
    a("v_mul_f32 v112, s9, v112")
    a("v_mul_f32 v120, s9, v120")
    a("v_fma_f32 v120, -v112, v112, v120")
    a("v_max_f32 v120, 0, v120")
    a("s_waitcnt vmcnt(14)")
    a("v_lshlrev_b32 v8, 16, v8")
    a("v_add_f32 v112, v8, v112")
    a("v_cvt_pk_bf16_f32 v13, v112, v120")
    a("v_lshlrev_b32 v112, 16, v13")
    a("v_and_b32 v120, s44, v13")
    a(f"v_add_f32 v120, {f32bits(1e-5)}, v120")
    a("v_cvt_pk_bf16_f32 v120, v120, v120")
    a("v_lshlrev_b32 v120, 16, v120")
    a("v_sqrt_f32 v120, v120")
    a("v_cvt_pk_bf16_f32 v120, v120, v120")
    a("v_lshlrev_b32 v120, 16, v120")
    a("v_rcp_f32 v120, v120")
    a(f"ds_write_b32 v12, v112 offset:{FIN}")
    a(f"ds_write_b32 v12, v120 offset:{FIN+256}")
    a("s_waitcnt lgkmcnt(0)")
    a.label("K34_SKIP")
    a("s_barrier")
    a("v_lshlrev_b32 v12, 5, v3")
    a(f"ds_read_b128 v[104:107], v12 offset:{FIN}")
    a(f"ds_read_b128 v[108:111], v12 offset:{FIN+16}")
    a(f"ds_read_b128 v[112:115], v12 offset:{FIN+256}")
    a(f"ds_read_b128 v[116:119], v12 offset:{FIN+272}")
    a("s_movk_i32 s9, 160")
    a("v_mul_lo_u32 v13, v4, s9")
    a("v_lshl_add_u32 v13, v3, 4, v13")
    a(f"v_add_u32 v13, {AT}, v13")
    a("s_waitcnt lgkmcnt(0)")
    for i in range(7):
        for k in range(4):
            x0 = 48 + 8 * i + 2 * k; x1 = x0 + 1
            a(f"v_sub_f32 v{x0}, v{x0}, v{104+2*k}")
            a(f"v_sub_f32 v{x1}, v{x1}, v{105+2*k}")
            a(f"v_cvt_pk_bf16_f32 v{12+2*(k&1)}, v{x0}, v{x1}")
            a(f"v_lshlrev_b32 v{x0}, 16, v{12+2*(k&1)}")
            a(f"v_and_b32 v{x1}, v248, v{12+2*(k&1)}")
            a(f"v_mul_f32 v{x0}, v{x0}, v{112+2*k}")
            a(f"v_mul_f32 v{x1}, v{x1}, v{113+2*k}")
            a(f"v_cvt_pk_bf16_f32 v{16+4*i+k}, v{x0}, v{x1}")
        a(f"ds_write_b128 v13, v[{16+4*i}:{19+4*i}] offset:{64*160*i}")
        a(wl[14+2*i]); a(wl[15+2*i])
    a("v_lshrrev_b32 v4, 4, v2")
    a("v_bfe_u32 v5, v2, 2, 2")
    a("v_lshl_add_u32 v4, v4, 2, v5")
    a("v_mul_lo_u32 v4, v4, s9")
    a("v_and_b32 v5, 3, v2")
    a("v_lshl_add_u32 v4, v5, 3, v4")
    a(f"v_add_u32 v4, {AT}, v4")
    a("v_add_u32 v5, 35840, v4")
    for r in range(32): a(f"v_mov_b32 v{96+r}, 0")
    a(f"s_add_u32 s48, s32, {hex(WS_W2F)}")
    a("s_addc_u32 s49, s33, 0")
    a("s_mov_b32 s50, 0x188000")
    a("s_mov_b32 s51, 0x00020000")
    a("s_mul_i32 s8, s4, 229376")
    a("s_lshl_b32 s10, s6, 12")
    a("s_add_u32 s8, s8, s10")
    a("v_add_u32 v11, s8, v9")
    for i in range(7):
        a(f"s_add_u32 s8, s4, {i}")
        a("s_cmp_ge_u32 s8, 7")
        a("s_cselect_b32 s10, 7, 0")
        a("s_sub_u32 s8, s8, s10")
        a(f"s_lshl_b32 s{61+i}, s8, 15")
    a("s_waitcnt lgkmcnt(0)")
    a("s_barrier")
    stamp()
    def trreads(s):
        b = 16 + 16 * (s & 1)
        base = 'v4' if s < 7 else 'v5'; so = (s % 7) * 5120
        out = []
        for mt in range(4):
            out.append(f"ds_read_b64_tr_b16 v[{b+4*mt}:{b+4*mt+1}], {base} offset:{so+32*mt}")
            out.append(f"ds_read_b64_tr_b16 v[{b+4*mt+2}:{b+4*mt+3}], {base} offset:{so+32*mt+2560}")
        return out
    w2l = [f"buffer_load_dwordx4 v[{128+4*k}:{131+4*k}], v11, s[48:51], s{61+k//4} offen offset:{(k%4)*1024}" for k in range(28)]
    NI = 10
    for x in trreads(0): a(x)
    for s in range(14):
        if s < 13:
            for x in trreads(s + 1): a(x)
        nW2 = 2 * min(max(0, s - 1), NI)
        a(f"s_waitcnt vmcnt({26-2*s + nW2}) lgkmcnt({8 if s < 13 else 0})")
        b = 16 + 16 * (s & 1)
        for mt in range(4):
            for T in range(2):
                acc = f"v[{96+16*T+4*mt}:{99+16*T+4*mt}]"
                w = 128 + 8 * s + 4 * T
                a(f"v_mfma_f32_16x16x32_bf16 {acc}, v[{w}:{w+3}], v[{b+4*mt}:{b+4*mt+3}], {acc}")
        if 1 <= s <= NI:
            a(w2l[2*(s-1)]); a(w2l[2*(s-1)+1])
    stamp()
    a("s_mul_i32 s8, s3, 229376")
    a("s_lshl_b32 s9, s7, 10")
    a("s_add_u32 s8, s8, s9")
    a("v_add_u32 v10, s8, v9")
    add64(a, 46, 32, WS_H1F)
    for mt in range(4):
        o = 80 + 4 * mt
        a(f"v_cvt_pk_bf16_f32 v{o}, v{96+4*mt}, v{97+4*mt}")
        a(f"v_cvt_pk_bf16_f32 v{o+1}, v{98+4*mt}, v{99+4*mt}")
        a(f"v_cvt_pk_bf16_f32 v{o+2}, v{112+4*mt}, v{113+4*mt}")
        a(f"v_cvt_pk_bf16_f32 v{o+3}, v{114+4*mt}, v{115+4*mt}")
        for r in range(4):
            a(f"v_pk_max_i16 v{o+r}, v{o+r}, 0")
        if mt: a(f"v_add_u32 v10, 57344, v10")
        a(f"global_store_dwordx4 v10, v[{o}:{o+3}], s[46:47] sc1")
    a("v_lshrrev_b32 v3, 3, v0")
    a("v_and_b32 v4, 7, v0")
    a("s_lshl_b32 s8, s4, 18")
    a("s_lshl_b32 s9, s3, 7")
    a("s_add_u32 s8, s8, s9")
    a("v_lshlrev_b32 v5, 15, v4")
    a("v_lshl_add_u32 v5, v3, 1, v5")
    a("v_add_u32 v5, s8, v5")
    for r in range(64): a(f"v_mov_b32 v{16+r}, 0")
    a(f"s_add_u32 s52, s32, {hex(WS_H1F)}")
    a("s_addc_u32 s53, s33, 0")
    a("s_mov_b32 s54, 0x700000")
    a("s_mov_b32 s55, 0x00020000")
    a("s_mul_i32 s8, s3, 229376")
    a("s_lshl_b32 s9, s6, 10")
    a("s_add_u32 s8, s8, s9")
    a("v_add_u32 v10, s8, v9")
    a("v_add_u32 v12, 57344, v10")
    a("v_add_u32 v13, 57344, v12")
    a("v_add_u32 v14, 57344, v13")
    for i in range(1, 7):
        a(f"s_lshr_b32 s{20+i}, s{61+i}, 2")
    a("s_waitcnt vmcnt(0) lgkmcnt(0)")
    a("v_mov_b32 v7, 1")
    a(f"v_mov_b32 v15, {CNT2}")
    a("s_mov_b64 exec, 1")
    a("ds_add_rtn_u32 v7, v15, v7")
    a("s_waitcnt lgkmcnt(0)")
    a("v_readfirstlane_b32 s8, v7")
    a("s_cmp_lg_u32 s8, 7")
    a("s_cbranch_scc1 K34_NOSIG")
    a("v_mov_b32 v7, s60")
    a("s_lshl_b32 s8, s2, 7")
    a(f"s_add_u32 s8, s8, {hex(WS_FL2)}")
    a("v_mov_b32 v15, s8")
    a("global_store_dword v15, v7, s[32:33] sc1")
    a.label("K34_NOSIG")
    a("s_mov_b64 exec, -1")
    for T in range(4):
        for mt in range(4):
            acc = f"v[{16+16*T+4*mt}:{19+16*T+4*mt}]"
            a(f"v_mfma_f32_16x16x32_bf16 {acc}, v[{128+4*T}:{131+4*T}], v[{80+4*mt}:{83+4*mt}], {acc}")
    a("s_cmp_eq_u32 s6, 0")
    a("s_cbranch_scc1 K34_DOPOLL")
    for x in w2l[2*NI:]: a(x)
    for e in range(8):
        a(f"buffer_load_ushort v{240+e}, v5, s[12:15], s{34+e} offen")
    a("s_branch K34_NOPOLL")
    a.label("K34_DOPOLL")
    a("s_and_b32 s8, s2, 31")
    a("v_min_u32 v15, 6, v2")
    a("v_lshlrev_b32 v15, 5, v15")
    a("v_add_u32 v15, s8, v15")
    a("v_lshlrev_b32 v15, 7, v15")
    a(f"v_add_u32 v15, {hex(WS_FL2)}, v15")
    a("s_mov_b32 s8, 0")
    a.label("K34_POLL")
    a("global_load_dword v7, v15, s[32:33] sc1")
    a("s_waitcnt vmcnt(0)")
    a("v_cmp_ne_u32 vcc, s60, v7")
    a("s_add_u32 s8, s8, 1")
    a("s_cbranch_vccz K34_POLLED")
    a("s_sleep 2")
    a("s_cmp_lt_u32 s8, 20000")
    a("s_cbranch_scc1 K34_POLL")
    a.label("K34_POLLED")
    for x in w2l[2*NI:]: a(x)
    for e in range(8):
        a(f"buffer_load_ushort v{240+e}, v5, s[12:15], s{34+e} offen")
    a.label("K34_NOPOLL")
    a("s_barrier")
    stamp()
    NB = 3
    AV = ['v10', 'v12', 'v13', 'v14']
    def loads(i):
        b = 80 + 16 * (i % NB)
        return [f"buffer_load_dwordx4 v[{b+4*mt}:{b+4*mt+3}], {AV[mt]}, s[52:55], s{20+i} offen sc1" for mt in range(4)]
    for i in range(1, 1 + NB):
        for x in loads(i): a(x)
    for i in range(1, 7):
        rem = min(7, i + NB) - (i + 1)
        a(f"s_waitcnt vmcnt({4*rem})")
        if i == 1: stamp()
        b = 80 + 16 * (i % NB)
        for T in range(4):
            for mt in range(4):
                acc = f"v[{16+16*T+4*mt}:{19+16*T+4*mt}]"
                w = 128 + 16 * i + 4 * T
                a(f"v_mfma_f32_16x16x32_bf16 {acc}, v[{w}:{w+3}], v[{b+4*mt}:{b+4*mt+3}], {acc}")
        if i + NB < 7:
            for x in loads(i + NB): a(x)
    stamp()
    a("v_and_b32 v6, 15, v2")
    a("v_lshrrev_b32 v7, 4, v2")
    a(f"s_movk_i32 s8, {RS}")
    a("v_mul_lo_u32 v6, v6, s8")
    a("v_lshl_add_u32 v6, v7, 4, v6")
    a(f"s_mul_i32 s9, s6, {WSZ}")
    a("v_add_u32 v6, s9, v6")
    for T in range(4):
        for mt in range(4):
            a(f"ds_write_b128 v6, v[{16+16*T+4*mt}:{19+16*T+4*mt}] offset:{mt*16*RS + 64*T}")
    a("s_waitcnt lgkmcnt(0)")
    a("s_barrier")
    stamp()
    a("v_mul_lo_u32 v6, v3, s8")
    a("v_lshl_add_u32 v6, v4, 5, v6")
    a(f"v_add_u32 v7, {4*WSZ}, v6")
    for w in range(8):
        base = 'v6' if w < 4 else 'v7'
        a(f"ds_read_b128 v[{80+8*w}:{83+8*w}], {base} offset:{(w%4)*WSZ}")
        a(f"ds_read_b128 v[{84+8*w}:{87+8*w}], {base} offset:{(w%4)*WSZ+16}")
    a("s_waitcnt lgkmcnt(0)")
    for e in range(8):
        a(f"v_add_f32 v{80+e}, v{80+e}, v{88+e}")
        a(f"v_add_f32 v{96+e}, v{96+e}, v{104+e}")
        a(f"v_add_f32 v{112+e}, v{112+e}, v{120+e}")
        a(f"v_add_f32 v{128+e}, v{128+e}, v{136+e}")
        a(f"v_add_f32 v{80+e}, v{80+e}, v{96+e}")
        a(f"v_add_f32 v{112+e}, v{112+e}, v{128+e}")
        a(f"v_add_f32 v{80+e}, v{80+e}, v{112+e}")
    for k in range(4):
        a(f"v_cvt_pk_bf16_f32 v12, v{80+2*k}, v{81+2*k}")
        a(f"v_lshlrev_b32 v13, 16, v12")
        a(f"v_and_b32 v14, s44, v12")
        a(f"v_lshlrev_b32 v{240+2*k}, 16, v{240+2*k}")
        a(f"v_lshlrev_b32 v{241+2*k}, 16, v{241+2*k}")
        a(f"v_add_f32 v13, v13, v{240+2*k}")
        a(f"v_add_f32 v14, v14, v{241+2*k}")
        a(f"v_cvt_pk_bf16_f32 v{16+k}, v13, v14")
    a("s_lshl_b32 s8, s3, 6")
    a("v_add_u32 v5, s8, v3")
    a("s_movk_i32 s9, 896")
    a("v_mul_lo_u32 v5, v5, s9")
    a("v_lshl_add_u32 v5, v4, 4, v5")
    a("s_lshl_b32 s8, s4, 7")
    a("v_add_u32 v5, s8, v5")
    a("global_store_dwordx4 v5, v[16:19], s[30:31] sc1")
    a("s_endpgm")
    a.label("K34_PF")
    a("s_sub_u32 s3, s2, 224")
    a("s_lshr_b32 s3, s3, 3")
    a("s_mul_i32 s3, s3, 401408")
    a("v_lshlrev_b32 v1, 4, v0")
    a("v_add_u32 v1, s3, v1")
    a("s_waitcnt lgkmcnt(0)")
    a(f"s_add_u32 s12, s32, {hex(WS_W2F)}")
    a("s_addc_u32 s13, s33, 0")
    a("s_mov_b32 s14, 0x188000")
    a("s_mov_b32 s15, 0x00020000")
    a("s_mov_b32 s4, 0")
    a.label("K34_PFL")
    for k in range(7):
        a(f"buffer_load_dwordx4 v[{8+4*k}:{11+4*k}], v1, s[12:15], s4 offen")
        a("s_add_u32 s4, s4, 8192")
    a("s_waitcnt vmcnt(0)")
    a("s_cmp_lt_u32 s4, 401408")
    a("s_cbranch_scc1 K34_PFL")
    a.label("K34_END")
    a("s_endpgm")
    return a.finalize(), 252, CNT2 + 64

if __name__ == '__main__':
    ks = [('k12_kernel', gen_k12, 256, 512), ('k34_kernel', gen_k34, 256, 512)]
    open('cdna_kernels/' + NAME + '.s', 'w').write(build(ks))
```

```python
from gen3 import *

PFN = 2
WS_ST = 0x0
WS_FL = 0x10000
def gen_k12():
    a = Asm()
    CH = 26624; UB = 9216; CS = 4352
    OS4 = [0, 64, 112, 160]
    TS = 264
    LIN = 92160; LS = 4224
    PART = 115200; TT = 139776; CNT = 147968; XTL = 148096
    stamp = lambda: a.lines.append("; STAMP")
    def gettag(lbl):
        a("v_readfirstlane_b32 s68, v207")
        a("s_cmp_lg_u32 s68, 0")
        a(f"s_cbranch_scc1 {lbl}_OK")
        a("s_mov_b32 s69, 0")
        a.label(f"{lbl}_L")
        a("s_sleep 4")
        a("v_mov_b32 v207, 0")
        a("global_load_dword v207, v207, s[62:63] sc1")
        a("s_waitcnt vmcnt(0)")
        a("v_readfirstlane_b32 s68, v207")
        a("s_add_u32 s69, s69, 1")
        a("s_cmp_lg_u32 s68, 0")
        a(f"s_cbranch_scc1 {lbl}_OK")
        a("s_cmp_lt_u32 s69, 20000")
        a(f"s_cbranch_scc1 {lbl}_L")
        a.label(f"{lbl}_OK")
    a("s_cmp_ge_u32 s2, 256")
    a("s_cbranch_scc1 K12_END")
    a("s_load_dwordx16 s[36:51], s[0:1], 0")
    a("s_load_dwordx8 s[52:59], s[0:1], 64")
    a("s_load_dwordx4 s[60:63], s[0:1], 96")
    a("s_load_dwordx2 s[64:65], s[0:1], 112")
    a("v_lshrrev_b32 v1, 6, v0")
    a("v_readfirstlane_b32 s6, v1")
    a("v_and_b32 v2, 63, v0")
    a("s_lshr_b32 s8, s6, 2")
    a("s_and_b32 s9, s6, 3")
    a("s_sub_u32 s4, s2, 32")
    a("s_lshl_b32 s4, s4, 1")
    a(f"s_mov_b32 s20, {L2E}")
    a(f"s_mov_b32 s21, {L2E_LO}")
    a(f"s_mov_b32 s22, {LN2}")
    a(f"s_mov_b32 s23, {INV2PI}")
    a("s_mov_b32 s24, 0xffff0000")
    a("s_mov_b32 s25, 0x07060302")
    a("s_cmp_lt_u32 s2, 32")
    a("s_cbranch_scc1 K12_TR")
    a("s_add_u32 s4, s4, s8")
    a("v_and_b32 v5, 31, v2")
    a("v_lshlrev_b32 v5, 1, v5")
    a("s_lshl_b32 s7, s4, 9")
    a("s_lshl_b32 s10, s9, 7")
    a("s_add_u32 s7, s7, s10")
    a("v_add_u32 v5, s7, v5")
    a("s_lshl_b32 s7, s4, 1")
    a("v_mov_b32 v6, s7")
    a("s_sub_u32 s3, s2, 32")
    a("s_and_b32 s66, s3, 31")
    a("s_lshr_b32 s67, s3, 5")
    a("v_lshrrev_b32 v7, 3, v0")
    a("v_and_b32 v8, 7, v0")
    a("s_lshl_b32 s7, s66, 6")
    a("v_add_u32 v9, s7, v7")
    a("s_movk_i32 s7, 896")
    a("v_mul_lo_u32 v9, v9, s7")
    a("v_lshl_add_u32 v9, v8, 4, v9")
    a("s_lshl_b32 s7, s67, 7")
    a("v_add_u32 v9, s7, v9")
    a("s_movk_i32 s7, 144")
    a("v_mul_lo_u32 v206, v7, s7")
    a("v_lshl_add_u32 v206, v8, 4, v206")
    a(f"v_add_u32 v206, {XTL}, v206")
    a("v_mov_b32 v7, 0")
    a(f"v_mov_b32 v15, {CNT}")
    a("ds_write_b32 v15, v7")
    a("ds_write_b32 v15, v7 offset:4")
    a("s_waitcnt lgkmcnt(0)")
    a("global_load_dwordx4 v[208:211], v9, s[36:37]")
    a("global_load_ushort v14, v6, s[50:51]")
    for bt in range(2):
        for i, sp in enumerate((38, 40, 42, 44, 46, 48)):
            a(f"global_load_ushort v{176+8*bt+i}, v5, s[{sp}:{sp+1}] offset:{64*bt}")
    a("global_load_ushort v200, v6, s[52:53]")
    a("v_cmp_lt_u32 s[26:27], 31, v2")
    a("v_mov_b32 v8, 1.0")
    a(f"v_mov_b32 v9, {f32bits(128.0)}")
    a("v_cndmask_b32 v202, v8, v9, s[26:27]")
    a(f"v_mov_b32 v8, {f32bits(8.0)}")
    a(f"v_mov_b32 v9, {f32bits(1024.0)}")
    a("v_cndmask_b32 v203, v8, v9, s[26:27]")
    a("v_and_b32 v8, 31, v2")
    a(f"s_movk_i32 s7, {TS}")
    a("v_mul_lo_u32 v8, v8, s7")
    a(f"s_mul_i32 s7, s6, {32*TS}")
    a("v_add_u32 v204, s7, v8")
    a("v_lshrrev_b32 v8, 5, v2")
    a("v_lshl_add_u32 v205, v8, 6, v204")
    a("v_and_b32 v3, 15, v2")
    a("v_lshrrev_b32 v4, 4, v2")
    def bases(row, o0, o1, o2, t0, t1):
        a(f"v_and_b32 {t0}, 7, {row}")
        a(f"v_lshrrev_b32 {t1}, 3, {row}")
        a(f"v_lshl_add_u32 {o0}, {t1}, 7, {t0}")
        a(f"v_and_b32 {t0}, 3, {row}")
        a(f"v_lshlrev_b32 {t0}, 1, {t0}")
        a(f"v_bfe_u32 {t1}, {row}, 2, 1")
        a(f"v_lshl_add_u32 {t0}, {t1}, 7, {t0}")
        a(f"v_add_u32 {t0}, 0x100, {t0}")
        a(f"v_and_b32 {t1}, 1, {row}")
        a(f"v_lshlrev_b32 {t1}, 2, {t1}")
        a(f"v_bfe_u32 {o2}, {row}, 1, 2")
        a(f"v_lshl_add_u32 {t1}, {o2}, 7, {t1}")
        a(f"v_add_u32 {t1}, 0x200, {t1}")
        a(f"v_cmp_gt_u32 vcc, 8, {row}")
        a(f"v_cndmask_b32 {o1}, {t1}, {t0}, vcc")
        a(f"v_lshlrev_b32 {o2}, 7, {row}")
        a(f"v_add_u32 {o2}, 0x400, {o2}")
    bases('v3', 'v6', 'v12', 'v8', 'v9', 'v10')
    a(f"s_movk_i32 s10, {8*TS}")
    a("v_mul_lo_u32 v9, v4, s10")
    a("v_add_u32 v9, s7, v9")
    a("v_lshrrev_b32 v10, 2, v3")
    a("v_add_u32 v10, 25, v10")
    a("v_lshl_add_u32 v144, v10, 3, v9")
    a("v_and_b32 v10, 3, v3")
    a("v_add_u32 v10, 29, v10")
    a("v_lshl_add_u32 v145, v10, 3, v9")
    for (b, rc, ro) in (('v6', 146, 147), ('v12', 148, 149)):
        a(f"v_lshrrev_b32 v10, 7, {b}")
        a("v_add_u32 v10, 8, v10")
        a(f"v_lshl_add_u32 v{rc}, v10, 3, v9")
        a(f"v_and_b32 v10, 7, {b}")
        a(f"v_lshl_add_u32 v{ro}, v10, 3, v9")
    a("v_lshrrev_b32 v10, 7, v8")
    a("v_min_u32 v10, 16, v10")
    a("v_add_u32 v10, 8, v10")
    a("v_lshl_add_u32 v150, v10, 3, v9")
    for r in range(12): a(f"v_mov_b32 v{160+r}, 0")
    a("v_mov_b32 v159, s24")
    a("v_lshlrev_b32 v10, 2, v4")
    a("v_add_u32 v10, s9, v10")
    bases('v10', 'v44', 'v45', 'v46', 'v11', 'v13')
    a("s_lshl_b32 s11, s8, 12")
    a(f"s_add_u32 s11, s11, {TT}")
    a("s_movk_i32 s12, 0x7f")
    a("s_movk_i32 s13, 0x800")
    for b in range(3):
        a(f"v_lshl_add_u32 v{44+b}, v3, 3, v{44+b}")
        a(f"v_cvt_f32_u32 v{48+b}, v{44+b}")
        a(f"v_lshrrev_b32 v{48+b}, 16, v{48+b}")
        a(f"v_subrev_u32 v{48+b}, 0x4280, v{48+b}")
        a(f"v_med3_i32 v{48+b}, v{48+b}, v{44+b}, s12")
        a(f"v_mov_b32 v52, 1000")
        a(f"v_cmp_ge_u32 vcc, s13, v{44+b}")
        a(f"v_cndmask_b32 v{48+b}, v52, v{48+b}, vcc")
        a(f"v_lshlrev_b32 v{48+b}, 2, v{48+b}")
        a(f"v_add_u32 v{152+b}, s11, v{48+b}")
    a("s_waitcnt vmcnt(13)")
    a("v_lshlrev_b32 v14, 16, v14")
    a("v_mul_f32 v15, s20, v14")
    a("v_fma_f32 v16, v14, s20, -v15")
    a("v_fma_f32 v16, v14, s21, v16")
    a("v_exp_f32 v17, v15")
    a("v_mul_f32 v16, s22, v16")
    a("v_fma_f32 v17, v17, v16, v17")
    a("v_cvt_pk_bf16_f32 v17, v17, v17")
    a("v_lshlrev_b32 v201, 16, v17")
    a("ds_write_b128 v206, v[208:211]")
    a("s_waitcnt vmcnt(7)")
    stamp()
    def cmul(d, x, y):
        return [f"v_mul_f32 v{d}, v{x}, v{y}", f"v_mul_f32 v{d+1}, v{x}, v{y+1}",
                f"v_fma_f32 v{d}, -v{x+1}, v{y+1}, v{d}", f"v_fma_f32 v{d+1}, v{x+1}, v{y}, v{d+1}"]
    def build(bt):
        pb = 176 + 8 * bt
        for i in range(6): a(f"v_lshlrev_b32 v{pb+i}, 16, v{pb+i}")
        a(f"v_mul_f32 v8, v201, v{pb}")
        a(f"v_mul_f32 v9, v201, v{pb+1}")
        a("v_mul_f32 v8, s20, v8")
        a("v_mul_f32 v9, s23, v9")
        a(f"v_mul_f32 v10, v201, v{pb+2}")
        a(f"v_mul_f32 v11, v201, v{pb+3}")
        a(f"v_mul_f32 v28, v{pb+4}, v10")
        a(f"v_fma_f32 v28, -v{pb+5}, v11, v28")
        a(f"v_mul_f32 v29, v{pb+4}, v11")
        a(f"v_fma_f32 v29, v{pb+5}, v10, v29")
        for (ex, d, t) in (('v202', 32, 10), ('v203', 30, 12)):
            a(f"v_mul_f32 v{t}, v8, {ex}")
            a(f"v_mul_f32 v{t+1}, v9, {ex}")
        for (ex, d, t) in (('v202', 32, 10), ('v203', 30, 12)):
            a(f"v_exp_f32 v{t}, v{t}")
            a(f"v_fract_f32 v{t+1}, v{t+1}")
        for (ex, d, t) in (('v202', 32, 10), ('v203', 30, 12)):
            a(f"v_cos_f32 v{d}, v{t+1}")
            a(f"v_sin_f32 v{d+1}, v{t+1}")
        for (ex, d, t) in (('v202', 32, 10), ('v203', 30, 12)):
            a(f"v_mul_f32 v{d}, v{t}, v{d}")
            a(f"v_mul_f32 v{d+1}, v{t}, v{d+1}")
        Y = lambda k: 30 + 2 * k
        a("v_mov_b32 v12, 1.0"); a("v_mov_b32 v13, 0")
        for l in cmul(Y(2), Y(1), Y(1)): a(l)
        for l in cmul(46, 30, 30): a(l)
        for l in cmul(Y(3), Y(2), Y(1)): a(l)
        for l in cmul(Y(4), Y(2), Y(2)): a(l)
        for l in cmul(Y(6), Y(3), Y(3)): a(l)
        for l in cmul(Y(5), Y(4), Y(1)): a(l)
        for l in cmul(Y(7), Y(4), Y(3)): a(l)
        a("ds_write_b64 v205, v[12:13]")
        for k in range(1, 8): a(f"ds_write_b64 v205, v[{Y(k)}:{Y(k)+1}] offset:{8*k}")
        a("s_mov_b64 exec, s[26:27]")
        a(f"ds_write_b64 v204, v[30:31] offset:{8*16}")
        a(f"ds_write_b64 v204, v[46:47] offset:{8*24}")
        for k in range(1, 8):
            for l in cmul(48 + 2 * k, 30, Y(k)): a(l)
        for k in range(1, 8): a(f"ds_write_b64 v204, v[{48+2*k}:{49+2*k}] offset:{8*(16+k)}")
        a("s_not_b64 exec, s[26:27]")
        for l in cmul(50, 46, 30): a(l)
        for l in cmul(52, 46, 46): a(l)
        for l in cmul(58, 28, 30): a(l)
        for l in cmul(60, 28, 46): a(l)
        for l in cmul(54, 52, 52): a(l)
        for l in cmul(62, 28, 50): a(l)
        for l in cmul(56, 54, 52): a(l)
        a(f"ds_write_b64 v204, v[12:13] offset:{8*25}")
        for k in range(3): a(f"ds_write_b64 v204, v[{52+2*k}:{53+2*k}] offset:{8*(26+k)}")
        a(f"ds_write_b64 v204, v[28:29] offset:{8*29}")
        for k in range(3): a(f"ds_write_b64 v204, v[{58+2*k}:{59+2*k}] offset:{8*(30+k)}")
        a("s_mov_b64 exec, -1")
    def frag(setid, X, hl): return 80 + 32 * setid + 8 * X + 4 * hl
    def mfmas(setid):
        out = []
        for b in range(3):
            acc = f"v[{160+4*b}:{163+4*b}]"
            Fh = frag(setid, b + 1, 0); Fl = frag(setid, b + 1, 1); Gh = frag(setid, 0, 0); Gl = frag(setid, 0, 1)
            out.append(f"v_mfma_f32_16x16x32_bf16 {acc}, v[{Fh}:{Fh+3}], v[{Gh}:{Gh+3}], {acc}")
            out.append(f"v_mfma_f32_16x16x32_bf16 {acc}, v[{Fh}:{Fh+3}], v[{Gl}:{Gl+3}], {acc}")
            out.append(f"v_mfma_f32_16x16x32_bf16 {acc}, v[{Fl}:{Fl+3}], v[{Gh}:{Gh+3}], {acc}")
        return out
    def treads(idx):
        b = 16 + 14 * (idx % 3)
        off = idx * TS
        return [f"ds_read_b64 v[{b+2*k}:{b+2*k+1}], v{144+k} offset:{off}" for k in range(7)]
    def checkpoint():
        n = checkpoint.n; checkpoint.n += 1
        a("s_cmp_lg_u32 s15, 0")
        a(f"s_cbranch_scc1 K12_CP{n}_END")
        a("s_cmp_lg_u32 s6, 0")
        a(f"s_cbranch_scc1 K12_CP{n}_LDS")
        a("s_waitcnt vmcnt(0)")
        a("v_cmp_ne_u32 vcc, s68, v206")
        a(f"s_cbranch_vccz K12_CP{n}_GO")
        a("global_load_dword v206, v151, s[64:65] sc1")
        a(f"s_branch K12_CP{n}_END")
        a.label(f"K12_CP{n}_GO")
        a("v_mov_b32 v7, 1")
        a("ds_write_b32 v158, v7")
        a(f"s_branch K12_CP{n}_LD")
        a.label(f"K12_CP{n}_LDS")
        a("ds_read_b32 v7, v158")
        a("s_waitcnt lgkmcnt(0)")
        a("v_readfirstlane_b32 s13, v7")
        a("s_cmp_eq_u32 s13, 0")
        a(f"s_cbranch_scc1 K12_CP{n}_END")
        a.label(f"K12_CP{n}_LD")
        a("global_load_dwordx4 v[196:199], v156, s[16:17] sc1")
        for k in range(4):
            a(f"global_load_dwordx4 v[{208+4*k}:{211+4*k}], v157, s[64:65] offset:{16*k} sc1")
        a("s_mov_b32 s15, 1")
        a.label(f"K12_CP{n}_END")
        a("s_waitcnt lgkmcnt(0)")
    checkpoint.n = 0
    pend = []
    for bt in range(2):
        build(bt)
        for m in pend: a(m)
        pend = []
        a("s_waitcnt lgkmcnt(0)")
        if bt == 0:
            a("s_barrier")
            a("v_bfe_u32 v8, v2, 2, 2")
            a("v_lshl_add_u32 v8, v4, 3, v8")
            a("s_lshr_b32 s7, s6, 2")
            a("s_lshl_b32 s10, s7, 5")
            a("v_add_u32 v8, s10, v8")
            a("s_movk_i32 s10, 144")
            a("v_mul_lo_u32 v8, v8, s10")
            a("v_and_b32 v9, 3, v2")
            a("v_lshl_add_u32 v8, v9, 3, v8")
            a("s_lshl_b32 s10, s9, 5")
            a(f"s_add_u32 s10, s10, {XTL}")
            a("v_add_u32 v8, s10, v8")
            a("ds_read_b64_tr_b16 v[208:209], v8")
            a(f"ds_read_b64_tr_b16 v[210:211], v8 offset:{4*144}")
            a("s_lshl_b32 s10, s67, 6")
            a("s_lshl_b32 s13, s9, 4")
            a("s_add_u32 s10, s10, s13")
            a("v_add_u32 v9, s10, v3")
            a("v_lshlrev_b32 v9, 12, v9")
            a("v_lshl_add_u32 v9, v4, 4, v9")
            a("s_lshl_b32 s10, s66, 7")
            a("s_lshl_b32 s13, s7, 6")
            a("s_add_u32 s10, s10, s13")
            a(f"s_add_u32 s10, s10, {hex(WS_XT)}")
            a("v_add_u32 v9, s10, v9")
            a("s_waitcnt lgkmcnt(0)")
            a("global_store_dwordx4 v9, v[208:211], s[64:65] sc1")
            a("v_mov_b32 v207, 0")
            a("global_load_dword v207, v207, s[62:63] sc1")
        for x in treads(0): a(x)
        for x in treads(1): a(x)
        for ss in range(2):
            body = []
            st = ss
            for e in range(4):
                idx = 4 * ss + e
                if idx < 6:
                    body += treads(idx + 2)
                    body.append("s_waitcnt lgkmcnt(14)")
                elif idx == 6:
                    body.append("s_waitcnt lgkmcnt(7)")
                else:
                    body.append("s_waitcnt lgkmcnt(0)")
                if bt == 1 and e == 2: body.append("@CP")
                b = 16 + 14 * (idx % 3)
                P, Q, C0, O0, C1, O1, C2 = [b + 2 * k for k in range(7)]
                body += [f"v_mul_f32 v58, v{P}, v{Q}", f"v_mul_f32 v59, v{P}, v{Q+1}",
                         f"v_mul_f32 v60, v{C0}, v{O0}", f"v_mul_f32 v61, v{C0}, v{O0+1}",
                         f"v_mul_f32 v62, v{C1}, v{O1}", f"v_mul_f32 v63, v{C1}, v{O1+1}",
                         f"v_fma_f32 v58, -v{P+1}, v{Q+1}, v58", f"v_fma_f32 v59, -v{P+1}, v{Q}, -v59",
                         f"v_fma_f32 v60, -v{C0+1}, v{O0+1}, v60", f"v_fma_f32 v61, v{C0+1}, v{O0}, v61",
                         f"v_fma_f32 v62, -v{C1+1}, v{O1+1}, v62", f"v_fma_f32 v63, v{C1+1}, v{O1}, v63"]
                vals = [(58, 59), (60, 61), (62, 63), (C2, C2 + 1)]
                order = [3, 0, 1, 2]
                for X in order:
                    r, i = vals[X]
                    body.append(f"v_perm_b32 v{frag(st,X,0)+e}, v{i}, v{r}, s25")
                    body.append(f"v_and_b32 v{66+2*X}, v159, v{r}")
                    body.append(f"v_and_b32 v{67+2*X}, v159, v{i}")
                for X in order:
                    r, i = vals[X]
                    body.append(f"v_sub_f32 v{66+2*X}, v{r}, v{66+2*X}")
                    body.append(f"v_sub_f32 v{67+2*X}, v{i}, v{67+2*X}")
                for X in order:
                    body.append(f"v_perm_b32 v{frag(st,X,1)+e}, v{67+2*X}, v{66+2*X}, s25")
            if pend:
                body = interleave(body, pend, start=8)
            for x in body:
                if x == "@CP": checkpoint()
                else: a(x)
            pend = mfmas(st)
            if bt == 0 and ss == 0:
                a("s_waitcnt vmcnt(0)")
                gettag("K12_T1")
                a("v_mov_b32 v7, 1")
                a(f"v_mov_b32 v15, {CNT}")
                a("s_mov_b64 exec, 1")
                a("ds_add_rtn_u32 v7, v15, v7")
                a("s_waitcnt lgkmcnt(0)")
                a("v_readfirstlane_b32 s7, v7")
                a("s_cmp_lg_u32 s7, 7")
                a("s_cbranch_scc1 K12_NOSIG1")
                a("v_mov_b32 v7, s68")
                a("s_lshl_b32 s7, s3, 7")
                a(f"s_add_u32 s7, s7, {hex(WS_FL)}")
                a("v_mov_b32 v15, s7")
                a("global_store_dword v15, v7, s[64:65] sc1")
                a.label("K12_NOSIG1")
                a("s_mov_b64 exec, -1")

            if bt == 0 and ss == 0:
                a("s_lshl_b32 s5, s4, 12")
                a(f"s_mul_i32 s10, s8, {CH}")
                a("v_and_b32 v155, 0xff, v0")
                a("v_lshlrev_b32 v156, 4, v155")
                a("v_lshlrev_b32 v157, 2, v156")
                a("s_add_u32 s16, s64, s5")
                a("s_addc_u32 s17, s65, 0")
                add64(a, 30, 16, WS_HT)
                a(f"s_add_u32 s16, s16, {hex(WS_XT)}")
                a("s_addc_u32 s17, s17, 0")
                a(f"v_mov_b32 v158, {CNT+4}")
                a("s_mov_b32 s15, 0")
                a("s_lshr_b32 s14, s4, 6")
                a("s_lshl_b32 s14, s14, 5")
                a("v_and_b32 v151, 31, v2")
                a("v_add_u32 v8, s14, v151")
                a("v_add_u32 v151, 224, v151")
                a("v_cmp_gt_u32 vcc, 32, v2")
                a("v_cndmask_b32 v151, v151, v8, vcc")
                a("v_lshlrev_b32 v151, 7, v151")
                a(f"v_add_u32 v151, {hex(WS_FL)}, v151")
                a("v_mov_b32 v206, 0")
            if (bt, ss) in ((0, 1), (1, 0)):
                checkpoint()
    for m in pend: a(m)
    a("s_mov_b32 s14, 0")
    a.label("K12_SPIN")
    checkpoint()
    a("s_cmp_lg_u32 s15, 0")
    a("s_cbranch_scc1 K12_LDDONE")
    a("s_sleep 2")
    a("s_add_u32 s14, s14, 1")
    a("s_cmp_lt_u32 s14, 50000")
    a("s_cbranch_scc1 K12_SPIN")
    a.label("K12_LDDONE")
    stamp()
    a("s_mul_i32 s7, s6, 3072")
    a(f"s_add_u32 s7, s7, {PART}")
    a("v_lshlrev_b32 v9, 2, v2")
    a("v_add_u32 v10, s7, v9")
    for r in range(12):
        a(f"ds_write_b32 v10, v{160+r} offset:{r*256}")
    a("v_mov_b32 v3, v155")
    a("v_mov_b32 v4, v156")
    a(f"s_mul_i32 s7, s8, {LS}")
    a(f"s_add_u32 s7, s7, {LIN}")
    a("v_add_u32 v5, s7, v4")
    a("v_mov_b32 v24, 0"); a("v_mov_b32 v25, 0"); a("v_mov_b32 v26, 0"); a("v_mov_b32 v27, 0")
    a("v_cmp_gt_u32 vcc, 2, v3")
    a("s_and_saveexec_b64 s[28:29], vcc")
    a("ds_write_b128 v5, v[24:27]")
    a("ds_write_b128 v5, v[24:27] offset:4128")
    a("s_mov_b64 exec, s[28:29]")
    def ucalc(xr, sr, out, n):
        for k in range(n):
            t = 44 + 3 * (k & 1)
            a(f"v_lshlrev_b32 v{t}, 16, v{xr+k}")
            a(f"v_and_b32 v{t+1}, s24, v{xr+k}")
            a(f"v_sub_f32 v{t}, v{t}, v{sr+4*k}")
            a(f"v_sub_f32 v{t+1}, v{t+1}, v{sr+2+4*k}")
            a(f"v_cvt_pk_bf16_f32 v{t+2}, v{t}, v{t+1}")
            a(f"v_lshlrev_b32 v{t}, 16, v{t+2}")
            a(f"v_and_b32 v{t+1}, s24, v{t+2}")
            a(f"v_mul_f32 v{t}, v{t}, v{sr+1+4*k}")
            a(f"v_mul_f32 v{t+1}, v{t+1}, v{sr+3+4*k}")
            a(f"v_cvt_pk_bf16_f32 v{out+k}, v{t}, v{t+1}")
    a("s_waitcnt vmcnt(0)")
    ucalc(196, 208, 192, 4)
    a("ds_write_b128 v5, v[192:195] offset:32")
    a("v_lshlrev_b32 v10, 3, v3")
    a("v_sub_u32 v10, 0x7ff, v10")
    for e in range(8):
        a(f"v_subrev_u32 v{44+e}, {e}, v10")
        a(f"v_cvt_f32_u32 v{52+e}, v{44+e}")
        a(f"v_cvt_pk_bf16_f32 v{52+e}, v{52+e}, v{52+e}")
        a(f"v_and_b32 v{52+e}, 0xffff, v{52+e}")
        a(f"v_subrev_u32 v{52+e}, 0x4280, v{52+e}")
        a(f"v_med3_i32 v{52+e}, v{52+e}, v{44+e}, s12")
        a(f"v_lshlrev_b32 v{52+e}, 2, v{52+e}")
        a(f"v_add_u32 v{52+e}, s11, v{52+e}")
    a("s_waitcnt lgkmcnt(0)")
    a("s_barrier")
    stamp()
    a("s_mul_i32 s7, s8, 12288")
    a("s_lshl_b32 s13, s9, 8")
    a("s_add_u32 s7, s7, s13")
    a(f"s_add_u32 s7, s7, {PART}")
    a("v_add_u32 v9, s7, v9")
    for b in range(3):
        for w in range(4):
            a(f"ds_read_b32 v{80+4*b+w}, v9 offset:{w*3072 + b*1024}")
    a("v_add_u32 v6, s10, v4")
    a("v_mov_b32 v24, 0"); a("v_mov_b32 v25, 0"); a("v_mov_b32 v26, 0"); a("v_mov_b32 v27, 0")
    a("v_cmp_gt_u32 vcc, 32, v3")
    a("s_and_saveexec_b64 s[28:29], vcc")
    a("ds_write_b128 v6, v[24:27] offset:4096")
    a("ds_write_b128 v6, v[24:27] offset:8704")
    a("s_mov_b64 exec, s[28:29]")
    a("ds_read_b128 v[16:19], v5")
    a("ds_read_b128 v[20:23], v5 offset:16")
    a("ds_read_b128 v[208:211], v5 offset:4096")
    a("ds_read_b128 v[212:215], v5 offset:4112")
    a("s_waitcnt lgkmcnt(0)")
    for b in range(3):
        a(f"v_add_f32 v{80+4*b}, v{80+4*b}, v{81+4*b}")
        a(f"v_add_f32 v{82+4*b}, v{82+4*b}, v{83+4*b}")
        a(f"v_add_f32 v{80+4*b}, v{80+4*b}, v{82+4*b}")
        a(f"ds_write_b32 v{152+b}, v{80+4*b}")
    def copies(c0, off):
        for k in range(4): a(f"v_mov_b32 v{24+k}, v{c0+k+1}")
        for k in range(4): a(f"v_alignbyte_b32 v{30+k}, v{c0+k+1}, v{c0+k}, 2")
        for k in range(4): a(f"v_alignbyte_b32 v{38+k}, v{c0+k+2}, v{c0+k+1}, 2")
        src = {0: c0, 2: 24, 1: 30, 3: 38}
        for s in range(4):
            a(f"ds_write_b128 v6, v[{src[s]}:{src[s]+3}] offset:{UB + s*CS + OS4[s] + off}")
    copies(16, 0)
    a("s_cmp_lg_u32 s9, 0")
    a("s_cbranch_scc1 K12_NOC2")
    a("v_cmp_gt_u32 vcc, 2, v3")
    a("s_and_saveexec_b64 s[28:29], vcc")
    copies(208, 4096)
    a("s_mov_b64 exec, s[28:29]")
    a.label("K12_NOC2")
    a("s_waitcnt lgkmcnt(0)")
    a("s_barrier")
    stamp()
    for e in range(8):
        a(f"ds_read_b32 v{60+e}, v{52+e}")
    a("v_and_b32 v7, 15, v2")
    a("v_lshrrev_b32 v8, 4, v2")
    a("v_lshlrev_b32 v9, 5, v7")
    a("v_lshlrev_b32 v10, 4, v8")
    a("v_sub_u32 v9, v10, v9")
    a("s_lshl_b32 s7, s9, 6")
    a("s_sub_u32 s14, s10, s7")
    a("s_add_u32 s13, s14, 928")
    a("v_add_u32 v9, s13, v9")
    a("v_add_u32 v11, 1, v7")
    a("v_and_b32 v12, 3, v11")
    a("v_lshrrev_b32 v13, 2, v11")
    a("v_lshl_add_u32 v13, v8, 1, v13")
    a("v_lshlrev_b32 v13, 3, v13")
    a("v_lshlrev_b32 v14, 3, v12")
    a("s_mov_b32 s13, 0xa0704000")
    a("v_lshrrev_b32 v14, v14, s13")
    a("v_and_b32 v14, 0xff, v14")
    a("v_add_u32 v13, v13, v14")
    a(f"s_movk_i32 s13, {CS}")
    a("v_mul_lo_u32 v12, v12, s13")
    a("v_add_u32 v13, v13, v12")
    a(f"s_add_u32 s13, s14, {UB + 448}")
    a("v_add_u32 v10, s13, v13")
    a("s_waitcnt lgkmcnt(0)")
    for k in range(4):
        a(f"v_cvt_pk_bf16_f32 v{68+k}, v{60+2*k}, v{61+2*k}")
        a(f"v_lshlrev_b32 v76, 16, v{68+k}")
        a(f"v_and_b32 v77, s24, v{68+k}")
        a(f"v_sub_f32 v76, v{60+2*k}, v76")
        a(f"v_sub_f32 v77, v{61+2*k}, v77")
        a(f"v_cvt_pk_bf16_f32 v{72+k}, v76, v77")
    a("ds_write_b128 v6, v[68:71]")
    a("ds_write_b128 v6, v[72:75] offset:4608")
    for r in range(32): a(f"v_mov_b32 v{160+r}, 0")
    a("s_waitcnt lgkmcnt(0)")
    a("s_barrier")
    stamp()
    for gi in range(2):
        if gi == 1:
            a("v_subrev_u32 v9, 0x100, v9")
            a("v_subrev_u32 v10, 0x100, v10")
        for k in range(8):
            a(f"ds_read_b64 v[{128+4*k}:{129+4*k}], v10 offset:{512*k}")
            a(f"ds_read_b64 v[{130+4*k}:{131+4*k}], v10 offset:{512*k+8}")
            a(f"ds_read_b128 v[{64+8*k}:{67+8*k}], v9 offset:{512*(7-k)}")
            a(f"ds_read_b128 v[{68+8*k}:{71+8*k}], v9 offset:{512*(7-k)+4608}")
        for k in range(8):
            a(f"s_waitcnt lgkmcnt({min(15, 32-4*(k+1))})")
            pairs = [(k, dl) for dl in range(k + 1)] + [(t, k) for t in range(k)]
            for (t, dl) in pairs:
                if t + dl > 7: continue
                seg = t + dl
                acc = f"v[{160+4*seg}:{163+4*seg}]"
                a(f"v_mfma_f32_16x16x32_bf16 {acc}, v[{64+8*t}:{67+8*t}], v[{128+4*dl}:{131+4*dl}], {acc}")
                a(f"v_mfma_f32_16x16x32_bf16 {acc}, v[{68+8*t}:{71+8*t}], v[{128+4*dl}:{131+4*dl}], {acc}")
    a("s_barrier")
    stamp()
    a("s_lshl_b32 s7, s6, 13")
    a("v_lshlrev_b32 v9, 2, v2")
    a("v_add_u32 v9, s7, v9")
    for r in range(32):
        a(f"ds_write_b32 v9, v{160+r} offset:{256*r}")
    a("v_lshrrev_b32 v9, 5, v3")
    a("v_bfe_u32 v10, v3, 1, 4")
    a("v_and_b32 v11, 3, v10")
    a("v_lshl_add_u32 v9, v9, 2, v11")
    a("v_lshlrev_b32 v9, 8, v9")
    a("v_lshrrev_b32 v10, 2, v10")
    a("v_lshl_add_u32 v9, v10, 6, v9")
    a("v_and_b32 v11, 1, v3")
    a("v_lshl_add_u32 v9, v11, 5, v9")
    a("s_lshl_b32 s7, s8, 15")
    a("v_add_u32 v9, s7, v9")
    a("v_lshlrev_b32 v200, 16, v200")
    for k in range(4):
        a(f"v_lshlrev_b32 v25, 16, v{192+k}")
        a(f"v_and_b32 v26, s24, v{192+k}")
        a(f"v_mul_f32 v25, v25, v200")
        a(f"v_mul_f32 v26, v26, v200")
        a(f"v_cvt_pk_bf16_f32 v27, v25, v26")
        a(f"v_lshlrev_b32 v{208+2*k}, 16, v27")
        a(f"v_and_b32 v{209+2*k}, s24, v27")
        a(f"v_lshlrev_b32 v{216+2*k}, 16, v{196+k}")
        a(f"v_and_b32 v{217+2*k}, s24, v{196+k}")
    a("s_waitcnt lgkmcnt(0)")
    a("s_barrier")
    for w in range(4):
        a(f"ds_read_b128 v[{64+8*w}:{67+8*w}], v9 offset:{8192*w}")
        a(f"ds_read_b128 v[{68+8*w}:{71+8*w}], v9 offset:{8192*w+16}")
    a("s_waitcnt lgkmcnt(0)")
    for e in range(8):
        a(f"v_add_f32 v{64+e}, v{64+e}, v{72+e}")
        a(f"v_add_f32 v{80+e}, v{80+e}, v{88+e}")
        a(f"v_add_f32 v{64+e}, v{64+e}, v{80+e}")
    for k in range(4):
        a(f"v_cvt_pk_bf16_f32 v24, v{64+2*k}, v{65+2*k}")
        a(f"v_lshlrev_b32 v25, 16, v24")
        a(f"v_and_b32 v26, s24, v24")
        a(f"v_add_f32 v25, v25, v{208+2*k}")
        a(f"v_add_f32 v26, v26, v{209+2*k}")
        a(f"v_cvt_pk_bf16_f32 v24, v25, v26")
        a(f"v_lshlrev_b32 v25, 16, v24")
        a(f"v_and_b32 v26, s24, v24")
        a(f"v_add_f32 v25, v25, v{216+2*k}")
        a(f"v_add_f32 v26, v26, v{217+2*k}")
        a(f"v_cvt_pk_bf16_f32 v{32+k}, v25, v26")
    a("global_store_dwordx4 v4, v[32:35], s[30:31] sc1")
    a("s_endpgm")
    a.label("K12_TR")
    a.lines.append("; STAMP0")
    ST = 928
    a("s_getpc_b64 s[12:13]")
    a.label("K12_PC")
    a("s_sub_u32 s12, s12, K12_PC-k12_kernel")
    a("s_subb_u32 s13, s13, 0")
    a("s_mov_b32 s14, CODE_END-k12_kernel-16")
    a("v_lshlrev_b32 v3, 4, v0")
    for i in range(4):
        if i: a("v_add_u32 v3, 8192, v3")
        a("v_min_u32 v4, s14, v3")
        a(f"global_load_dwordx4 v[{208+4*i}:{211+4*i}], v4, s[12:13]")
    a("v_mov_b32 v7, 0")
    a(f"v_mov_b32 v15, {CNT}")
    a("ds_write_b32 v15, v7")
    a("ds_write_b32 v15, v7 offset:4")
    a("s_mov_b32 s3, s2")
    a("s_lshl_b32 s3, s3, 6")
    a("v_lshrrev_b32 v3, 3, v0")
    a("v_and_b32 v4, 7, v0")
    a("v_add_u32 v5, s3, v3")
    a("s_movk_i32 s7, 896")
    a("v_mul_lo_u32 v6, v5, s7")
    a("v_lshl_add_u32 v6, v4, 4, v6")
    a("s_waitcnt lgkmcnt(0)")
    a("s_or_b32 s7, s2, s6")
    a("s_cmp_lg_u32 s7, 0")
    a("s_cbranch_scc1 K12_NOTAG")
    a("s_memrealtime s[68:69]")
    a("s_waitcnt lgkmcnt(0)")
    a("s_or_b32 s68, s68, 1")
    a("v_mov_b32 v7, s68")
    a("v_mov_b32 v15, 0")
    a("global_store_dword v15, v7, s[62:63] sc1")
    a("v_mov_b32 v15, 0x20000")
    a("global_store_dword v15, v7, s[64:65] sc1")
    a.label("K12_NOTAG")
    a("s_barrier")
    for i in range(7):
        a(f"global_load_dwordx4 v[{16+4*i}:{19+4*i}], v6, s[36:37] offset:{128*i}")
    a("s_waitcnt vmcnt(0)")
    stamp()
    a("v_mov_b32 v207, 0")
    a("global_load_dword v207, v207, s[62:63] sc1")
    a.label("K12_TRX")
    a("v_mov_b32 v44, s24")
    for i in range(7):
        for k in range(4):
            a(f"v_lshlrev_b32 v{48+8*i+2*k}, 16, v{16+4*i+k}")
            a(f"v_and_b32 v{49+8*i+2*k}, v44, v{16+4*i+k}")
    a("v_add_f32 v8, v48, v49")
    a("v_add_f32 v9, v50, v51")
    for k in range(2, 28):
        a(f"v_add_f32 v{8+(k&1)}, v{8+(k&1)}, v{48+2*k}")
        a(f"v_add_f32 v{8+(k&1)}, v{8+(k&1)}, v{49+2*k}")
    a("v_add_f32 v8, v8, v9")
    def red8(r):
        a(f"v_add_f32_dpp {r}, {r}, {r} quad_perm:[1,0,3,2] row_mask:0xf bank_mask:0xf")
        a(f"v_add_f32_dpp {r}, {r}, {r} quad_perm:[2,3,0,1] row_mask:0xf bank_mask:0xf")
        a(f"v_add_f32_dpp {r}, {r}, {r} row_half_mirror row_mask:0xf bank_mask:0xf")
    red8('v8')
    a(f"s_mov_b32 s8, {f32bits(1.0/448)}")
    a("v_mul_f32 v8, s8, v8")
    a("v_mov_b32 v10, 0")
    a("v_mov_b32 v11, 0")
    for k in range(56):
        a(f"v_sub_f32 v{12+(k&1)}, v{48+k}, v8")
        a(f"v_fma_f32 v{10+(k&1)}, v{12+(k&1)}, v{12+(k&1)}, v{10+(k&1)}")
    a("v_add_f32 v10, v10, v11")
    red8('v10')
    a("v_mul_f32 v10, s8, v10")
    a("v_cvt_pk_bf16_f32 v11, v8, v10")
    a("v_lshlrev_b32 v8, 16, v11")
    a("v_and_b32 v10, s24, v11")
    a(f"v_add_f32 v10, {f32bits(1e-5)}, v10")
    a("v_cvt_pk_bf16_f32 v10, v10, v10")
    a("v_lshlrev_b32 v10, 16, v10")
    a("v_sqrt_f32 v10, v10")
    a("v_cvt_pk_bf16_f32 v10, v10, v10")
    a("v_lshlrev_b32 v10, 16, v10")
    a("v_rcp_f32 v9, v10")
    a("v_lshlrev_b32 v5, 3, v5")
    a("v_cmp_eq_u32 vcc, 0, v4")
    a("s_and_saveexec_b64 s[28:29], vcc")
    a("global_store_dwordx2 v5, v[8:9], s[64:65] sc1")
    a("s_mov_b64 exec, s[28:29]")
    a("s_waitcnt vmcnt(0)")
    stamp()
    gettag("K12_T2")
    a("v_mov_b32 v7, 1")
    a(f"v_mov_b32 v15, {CNT}")
    a("s_mov_b64 exec, 1")
    a("ds_add_rtn_u32 v7, v15, v7")
    a("s_waitcnt lgkmcnt(0)")
    a("v_readfirstlane_b32 s7, v7")
    a("s_cmp_lg_u32 s7, 7")
    a("s_cbranch_scc1 K12_NOSIG")
    a("v_mov_b32 v7, s68")
    a("s_add_u32 s7, s2, 224")
    a("s_lshl_b32 s7, s7, 7")
    a(f"s_add_u32 s7, s7, {hex(WS_FL)}")
    a("v_mov_b32 v15, s7")
    a("global_store_dword v15, v7, s[64:65] sc1")
    a.label("K12_NOSIG")
    a("s_mov_b64 exec, -1")
    a("s_barrier")
    a("s_lshl_b32 s3, s2, 3")
    a("s_add_u32 s3, s3, s6")
    a("s_mul_i32 s7, s6, 5120")
    a("v_lshrrev_b32 v3, 3, v2")
    a("v_and_b32 v4, 7, v2")
    a("s_movk_i32 s8, 3584")
    a("v_mul_lo_u32 v5, v3, s8")
    a("v_lshl_add_u32 v5, v4, 4, v5")
    a("s_movk_i32 s8, 896")
    a("v_mul_lo_u32 v11, v3, s8")
    a("v_lshl_add_u32 v11, v4, 4, v11")
    a("s_movk_i32 s8, 160")
    a("v_mul_lo_u32 v6, v3, s8")
    a("v_lshl_add_u32 v6, v4, 4, v6")
    a("v_add_u32 v6, s7, v6")
    a("v_lshrrev_b32 v7, 4, v2")
    a("v_bfe_u32 v8, v2, 2, 2")
    a("v_lshl_add_u32 v12, v7, 3, v8")
    a("v_lshl_add_u32 v7, v7, 2, v8")
    a("v_mul_lo_u32 v7, v7, s8")
    a("v_mul_lo_u32 v12, v12, s8")
    a("v_and_b32 v8, 3, v2")
    a("v_lshl_add_u32 v7, v8, 4, v7")
    a("v_add_u32 v7, s7, v7")
    a("v_lshl_add_u32 v12, v8, 3, v12")
    a("v_add_u32 v12, s7, v12")
    a("v_lshlrev_b32 v8, 4, v2")
    add64(a, 34, 64, WS_W1F)
    add64(a, 28, 64, WS_W2F)
    a("s_add_u32 s4, s3, 256")
    a("s_min_u32 s4, s4, 391")
    for j, su in enumerate(('s3', 's4')):
        a(f"s_mul_i32 s{40+4*j}, {su}, 9363")
        a(f"s_lshr_b32 s{40+4*j}, s{40+4*j}, 18")
        a(f"s_mul_i32 s{41+4*j}, s{40+4*j}, 28")
        a(f"s_sub_u32 s{41+4*j}, {su}, s{41+4*j}")
        a(f"s_mul_i32 s{42+4*j}, {su}, 9363")
        a(f"s_lshr_b32 s{42+4*j}, s{42+4*j}, 16")
        a(f"s_mul_i32 s{43+4*j}, s{42+4*j}, 7")
        a(f"s_sub_u32 s{43+4*j}, {su}, s{43+4*j}")
    for j in range(2):
        a(f"s_mul_i32 s11, s{40+4*j}, 114688")
        a(f"s_lshl_b32 s12, s{41+4*j}, 7")
        a("s_add_u32 s11, s11, s12")
        a("v_add_u32 v9, s11, v5")
        for i in range(4):
            if i: a(f"v_add_u32 v9, {8*3584}, v9")
            a(f"global_load_dwordx4 v[{64+16*j+4*i}:{67+16*j+4*i}], v9, s[56:57]")
    for j in range(2):
        a(f"s_mul_i32 s11, s{42+4*j}, 28672")
        a(f"s_lshl_b32 s12, s{43+4*j}, 7")
        a("s_add_u32 s11, s11, s12")
        a("v_add_u32 v9, s11, v11")
        for i in range(4):
            if i: a(f"v_add_u32 v9, {8*896}, v9")
            a(f"global_load_dwordx4 v[{96+16*j+4*i}:{99+16*j+4*i}], v9, s[58:59]")
    nst = 0
    for j in range(2):
        a(f"s_waitcnt vmcnt({12-4*j + nst})")
        for i in range(4):
            a(f"ds_write_b128 v6, v[{64+16*j+4*i}:{67+16*j+4*i}] offset:{8*160*i}")
        a("s_waitcnt lgkmcnt(0)")
        for fgl in range(2):
            for T in range(2):
                b = 128 + 16 * j + 8 * fgl + 4 * T
                a(f"ds_read_b64_tr_b16 v[{b}:{b+1}], v7 offset:{64*fgl+8*T}")
                a(f"ds_read_b64_tr_b16 v[{b+2}:{b+3}], v7 offset:{64*fgl+8*T+16*160}")
        a(f"s_mul_i32 s11, s{41+4*j}, 57344")
        a(f"s_lshl_b32 s12, s{40+4*j}, 11")
        a("s_add_u32 s11, s11, s12")
        a("v_add_u32 v9, s11, v8")
        a("v_add_u32 v10, 28672, v9")
        a("s_waitcnt lgkmcnt(0)")
        b = 128 + 16 * j
        a(f"global_store_dwordx4 v9, v[{b}:{b+3}], s[34:35] sc1")
        a(f"global_store_dwordx4 v9, v[{b+4}:{b+7}], s[34:35] offset:1024 sc1")
        a(f"global_store_dwordx4 v10, v[{b+8}:{b+11}], s[34:35] sc1")
        a(f"global_store_dwordx4 v10, v[{b+12}:{b+15}], s[34:35] offset:1024 sc1")
        nst += 4
    for j in range(2):
        a(f"s_waitcnt vmcnt({4-4*j + nst})")
        for i in range(4):
            a(f"ds_write_b128 v6, v[{96+16*j+4*i}:{99+16*j+4*i}] offset:{8*160*i}")
        a("s_waitcnt lgkmcnt(0)")
        for T in range(4):
            b = 160 + 16 * j + 4 * T
            a(f"ds_read_b64_tr_b16 v[{b}:{b+1}], v12 offset:{32*T}")
            a(f"ds_read_b64_tr_b16 v[{b+2}:{b+3}], v12 offset:{32*T+4*160}")
        a(f"s_mul_i32 s11, s{43+4*j}, 229376")
        a(f"s_lshl_b32 s12, s{42+4*j}, 12")
        a("s_add_u32 s11, s11, s12")
        a("v_add_u32 v9, s11, v8")
        a("s_waitcnt lgkmcnt(0)")
        for T in range(4):
            a(f"global_store_dwordx4 v9, v[{160+16*j+4*T}:{163+16*j+4*T}], s[28:29] offset:{1024*T} sc1")
        nst += 4
    a.label("K12_END")
    a("s_endpgm")
    return a.finalize(), 232, XTL + 9216

if __name__ == '__main__':
    ks = [('k12_kernel', gen_k12, 256, 512), ('k3_kernel', gen_k3, 256, 512), ('k4_kernel', gen_k4, 224, 512)]
    open('cdna_kernels/' + NAME + '.s', 'w').write(build(ks))
```

```python
from gen3 import *

PFN = 2
WS_ST = 0x0
WS_FL = 0x10000
def gen_k12():
    a = Asm()
    CH = 26624; UB = 9216; CS = 4352
    OS4 = [0, 64, 112, 160]
    TS = 264
    LIN = 92160; LS = 4224
    PART = 115200; TT = 139776; CNT = 147968; XTL = 148096; RED = 53248
    stamp = lambda: a.lines.append("; STAMP")
    def gettag(lbl):
        a("v_readfirstlane_b32 s68, v207")
        a("s_cmp_lg_u32 s68, 0")
        a(f"s_cbranch_scc1 {lbl}_OK")
        a("s_mov_b32 s69, 0")
        a.label(f"{lbl}_L")
        a("s_sleep 4")
        a("v_mov_b32 v207, 0")
        a("global_load_dword v207, v207, s[62:63] sc1")
        a("s_waitcnt vmcnt(0)")
        a("v_readfirstlane_b32 s68, v207")
        a("s_add_u32 s69, s69, 1")
        a("s_cmp_lg_u32 s68, 0")
        a(f"s_cbranch_scc1 {lbl}_OK")
        a("s_cmp_lt_u32 s69, 20000")
        a(f"s_cbranch_scc1 {lbl}_L")
        a.label(f"{lbl}_OK")
    a("s_cmp_ge_u32 s2, 256")
    a("s_cbranch_scc1 K12_END")
    a("s_load_dwordx16 s[36:51], s[0:1], 0")
    a("s_load_dwordx8 s[52:59], s[0:1], 64")
    a("s_load_dwordx4 s[60:63], s[0:1], 96")
    a("s_load_dwordx2 s[64:65], s[0:1], 112")
    a("v_lshrrev_b32 v1, 6, v0")
    a("v_readfirstlane_b32 s6, v1")
    a("v_and_b32 v2, 63, v0")
    a("s_lshr_b32 s8, s6, 2")
    a("s_and_b32 s9, s6, 3")
    a("s_sub_u32 s4, s2, 32")
    a("s_lshl_b32 s4, s4, 1")
    a(f"s_mov_b32 s20, {L2E}")
    a(f"s_mov_b32 s21, {L2E_LO}")
    a(f"s_mov_b32 s22, {LN2}")
    a(f"s_mov_b32 s23, {INV2PI}")
    a("s_mov_b32 s24, 0xffff0000")
    a("s_mov_b32 s25, 0x07060302")
    a("s_cmp_lt_u32 s2, 32")
    a("s_cbranch_scc1 K12_TR")
    a("s_add_u32 s4, s4, s8")
    a("v_and_b32 v5, 31, v2")
    a("v_lshlrev_b32 v5, 1, v5")
    a("s_lshl_b32 s7, s4, 9")
    a("s_lshl_b32 s10, s9, 7")
    a("s_add_u32 s7, s7, s10")
    a("v_add_u32 v5, s7, v5")
    a("s_lshl_b32 s7, s4, 1")
    a("v_mov_b32 v6, s7")
    a("s_sub_u32 s3, s2, 32")
    a("s_and_b32 s66, s3, 31")
    a("s_lshr_b32 s67, s3, 5")
    a("v_lshrrev_b32 v7, 3, v0")
    a("v_and_b32 v8, 7, v0")
    a("s_lshl_b32 s7, s66, 6")
    a("v_add_u32 v9, s7, v7")
    a("s_movk_i32 s7, 896")
    a("v_mul_lo_u32 v9, v9, s7")
    a("v_lshl_add_u32 v9, v8, 4, v9")
    a("s_lshl_b32 s7, s67, 7")
    a("v_add_u32 v9, s7, v9")
    a("s_movk_i32 s7, 144")
    a("v_mul_lo_u32 v206, v7, s7")
    a("v_lshl_add_u32 v206, v8, 4, v206")
    a(f"v_add_u32 v206, {XTL}, v206")
    a("v_mov_b32 v7, 0")
    a(f"v_mov_b32 v15, {CNT}")
    a("ds_write_b32 v15, v7")
    a("ds_write_b32 v15, v7 offset:4")
    a("s_waitcnt lgkmcnt(0)")
    a("global_load_dwordx4 v[208:211], v9, s[36:37]")
    a("global_load_ushort v14, v6, s[50:51]")
    for bt in range(2):
        for i, sp in enumerate((38, 40, 42, 44, 46, 48)):
            a(f"global_load_ushort v{176+8*bt+i}, v5, s[{sp}:{sp+1}] offset:{64*bt}")
    a("global_load_ushort v200, v6, s[52:53]")
    a("v_cmp_lt_u32 s[26:27], 31, v2")
    a("v_mov_b32 v8, 1.0")
    a(f"v_mov_b32 v9, {f32bits(128.0)}")
    a("v_cndmask_b32 v202, v8, v9, s[26:27]")
    a(f"v_mov_b32 v8, {f32bits(8.0)}")
    a(f"v_mov_b32 v9, {f32bits(1024.0)}")
    a("v_cndmask_b32 v203, v8, v9, s[26:27]")
    a("v_and_b32 v8, 31, v2")
    a(f"s_movk_i32 s7, {TS}")
    a("v_mul_lo_u32 v8, v8, s7")
    a(f"s_mul_i32 s7, s6, {32*TS}")
    a("v_add_u32 v204, s7, v8")
    a("v_lshrrev_b32 v8, 5, v2")
    a("v_lshl_add_u32 v205, v8, 6, v204")
    a("v_and_b32 v3, 15, v2")
    a("v_lshrrev_b32 v4, 4, v2")
    def bases(row, o0, o1, o2, t0, t1):
        a(f"v_and_b32 {t0}, 7, {row}")
        a(f"v_lshrrev_b32 {t1}, 3, {row}")
        a(f"v_lshl_add_u32 {o0}, {t1}, 7, {t0}")
        a(f"v_and_b32 {t0}, 3, {row}")
        a(f"v_lshlrev_b32 {t0}, 1, {t0}")
        a(f"v_bfe_u32 {t1}, {row}, 2, 1")
        a(f"v_lshl_add_u32 {t0}, {t1}, 7, {t0}")
        a(f"v_add_u32 {t0}, 0x100, {t0}")
        a(f"v_and_b32 {t1}, 1, {row}")
        a(f"v_lshlrev_b32 {t1}, 2, {t1}")
        a(f"v_bfe_u32 {o2}, {row}, 1, 2")
        a(f"v_lshl_add_u32 {t1}, {o2}, 7, {t1}")
        a(f"v_add_u32 {t1}, 0x200, {t1}")
        a(f"v_cmp_gt_u32 vcc, 8, {row}")
        a(f"v_cndmask_b32 {o1}, {t1}, {t0}, vcc")
        a(f"v_lshlrev_b32 {o2}, 7, {row}")
        a(f"v_add_u32 {o2}, 0x400, {o2}")
    bases('v3', 'v6', 'v12', 'v8', 'v9', 'v10')
    a(f"s_movk_i32 s10, {8*TS}")
    a("v_mul_lo_u32 v9, v4, s10")
    a("v_add_u32 v9, s7, v9")
    a("v_lshrrev_b32 v10, 2, v3")
    a("v_add_u32 v10, 25, v10")
    a("v_lshl_add_u32 v144, v10, 3, v9")
    a("v_and_b32 v10, 3, v3")
    a("v_add_u32 v10, 29, v10")
    a("v_lshl_add_u32 v145, v10, 3, v9")
    for (b, rc, ro) in (('v6', 146, 147), ('v12', 148, 149)):
        a(f"v_lshrrev_b32 v10, 7, {b}")
        a("v_add_u32 v10, 8, v10")
        a(f"v_lshl_add_u32 v{rc}, v10, 3, v9")
        a(f"v_and_b32 v10, 7, {b}")
        a(f"v_lshl_add_u32 v{ro}, v10, 3, v9")
    a("v_lshrrev_b32 v10, 7, v8")
    a("v_min_u32 v10, 16, v10")
    a("v_add_u32 v10, 8, v10")
    a("v_lshl_add_u32 v150, v10, 3, v9")
    for r in range(12): a(f"v_mov_b32 v{160+r}, 0")
    a("v_mov_b32 v159, s24")
    a("v_lshlrev_b32 v10, 2, v4")
    a("v_add_u32 v10, s9, v10")
    bases('v10', 'v44', 'v45', 'v46', 'v11', 'v13')
    a("s_lshl_b32 s11, s8, 12")
    a(f"s_add_u32 s11, s11, {TT}")
    a("s_movk_i32 s12, 0x7f")
    a("s_movk_i32 s13, 0x800")
    for b in range(3):
        a(f"v_lshl_add_u32 v{44+b}, v3, 3, v{44+b}")
        a(f"v_cvt_f32_u32 v{48+b}, v{44+b}")
        a(f"v_lshrrev_b32 v{48+b}, 16, v{48+b}")
        a(f"v_subrev_u32 v{48+b}, 0x4280, v{48+b}")
        a(f"v_med3_i32 v{48+b}, v{48+b}, v{44+b}, s12")
        a(f"v_mov_b32 v52, 1000")
        a(f"v_cmp_ge_u32 vcc, s13, v{44+b}")
        a(f"v_cndmask_b32 v{48+b}, v52, v{48+b}, vcc")
        a(f"v_lshlrev_b32 v{48+b}, 2, v{48+b}")
        a(f"v_add_u32 v{152+b}, s11, v{48+b}")
    a("s_waitcnt vmcnt(13)")
    a("v_lshlrev_b32 v14, 16, v14")
    a("v_mul_f32 v15, s20, v14")
    a("v_fma_f32 v16, v14, s20, -v15")
    a("v_fma_f32 v16, v14, s21, v16")
    a("v_exp_f32 v17, v15")
    a("v_mul_f32 v16, s22, v16")
    a("v_fma_f32 v17, v17, v16, v17")
    a("v_cvt_pk_bf16_f32 v17, v17, v17")
    a("v_lshlrev_b32 v201, 16, v17")
    a("ds_write_b128 v206, v[208:211]")
    a("s_waitcnt vmcnt(7)")
    stamp()
    def cmul(d, x, y):
        return [f"v_mul_f32 v{d}, v{x}, v{y}", f"v_mul_f32 v{d+1}, v{x}, v{y+1}",
                f"v_fma_f32 v{d}, -v{x+1}, v{y+1}, v{d}", f"v_fma_f32 v{d+1}, v{x+1}, v{y}, v{d+1}"]
    def build(bt):
        pb = 176 + 8 * bt
        for i in range(6): a(f"v_lshlrev_b32 v{pb+i}, 16, v{pb+i}")
        a(f"v_mul_f32 v8, v201, v{pb}")
        a(f"v_mul_f32 v9, v201, v{pb+1}")
        a("v_mul_f32 v8, s20, v8")
        a("v_mul_f32 v9, s23, v9")
        a(f"v_mul_f32 v10, v201, v{pb+2}")
        a(f"v_mul_f32 v11, v201, v{pb+3}")
        a(f"v_mul_f32 v28, v{pb+4}, v10")
        a(f"v_fma_f32 v28, -v{pb+5}, v11, v28")
        a(f"v_mul_f32 v29, v{pb+4}, v11")
        a(f"v_fma_f32 v29, v{pb+5}, v10, v29")
        for (ex, d, t) in (('v202', 32, 10), ('v203', 30, 12)):
            a(f"v_mul_f32 v{t}, v8, {ex}")
            a(f"v_mul_f32 v{t+1}, v9, {ex}")
        for (ex, d, t) in (('v202', 32, 10), ('v203', 30, 12)):
            a(f"v_exp_f32 v{t}, v{t}")
            a(f"v_fract_f32 v{t+1}, v{t+1}")
        for (ex, d, t) in (('v202', 32, 10), ('v203', 30, 12)):
            a(f"v_cos_f32 v{d}, v{t+1}")
            a(f"v_sin_f32 v{d+1}, v{t+1}")
        for (ex, d, t) in (('v202', 32, 10), ('v203', 30, 12)):
            a(f"v_mul_f32 v{d}, v{t}, v{d}")
            a(f"v_mul_f32 v{d+1}, v{t}, v{d+1}")
        Y = lambda k: 30 + 2 * k
        a("v_mov_b32 v12, 1.0"); a("v_mov_b32 v13, 0")
        for l in cmul(Y(2), Y(1), Y(1)): a(l)
        for l in cmul(46, 30, 30): a(l)
        for l in cmul(Y(3), Y(2), Y(1)): a(l)
        for l in cmul(Y(4), Y(2), Y(2)): a(l)
        for l in cmul(Y(6), Y(3), Y(3)): a(l)
        for l in cmul(Y(5), Y(4), Y(1)): a(l)
        for l in cmul(Y(7), Y(4), Y(3)): a(l)
        a("ds_write_b64 v205, v[12:13]")
        for k in range(1, 8): a(f"ds_write_b64 v205, v[{Y(k)}:{Y(k)+1}] offset:{8*k}")
        a("s_mov_b64 exec, s[26:27]")
        a(f"ds_write_b64 v204, v[30:31] offset:{8*16}")
        a(f"ds_write_b64 v204, v[46:47] offset:{8*24}")
        for k in range(1, 8):
            for l in cmul(48 + 2 * k, 30, Y(k)): a(l)
        for k in range(1, 8): a(f"ds_write_b64 v204, v[{48+2*k}:{49+2*k}] offset:{8*(16+k)}")
        a("s_not_b64 exec, s[26:27]")
        for l in cmul(50, 46, 30): a(l)
        for l in cmul(52, 46, 46): a(l)
        for l in cmul(58, 28, 30): a(l)
        for l in cmul(60, 28, 46): a(l)
        for l in cmul(54, 52, 52): a(l)
        for l in cmul(62, 28, 50): a(l)
        for l in cmul(56, 54, 52): a(l)
        a(f"ds_write_b64 v204, v[12:13] offset:{8*25}")
        for k in range(3): a(f"ds_write_b64 v204, v[{52+2*k}:{53+2*k}] offset:{8*(26+k)}")
        a(f"ds_write_b64 v204, v[28:29] offset:{8*29}")
        for k in range(3): a(f"ds_write_b64 v204, v[{58+2*k}:{59+2*k}] offset:{8*(30+k)}")
        a("s_mov_b64 exec, -1")
    def frag(setid, X, hl): return 80 + 32 * setid + 8 * X + 4 * hl
    def mfmas(setid):
        out = []
        for b in range(3):
            acc = f"v[{160+4*b}:{163+4*b}]"
            Fh = frag(setid, b + 1, 0); Fl = frag(setid, b + 1, 1); Gh = frag(setid, 0, 0); Gl = frag(setid, 0, 1)
            out.append(f"v_mfma_f32_16x16x32_bf16 {acc}, v[{Fh}:{Fh+3}], v[{Gh}:{Gh+3}], {acc}")
            out.append(f"v_mfma_f32_16x16x32_bf16 {acc}, v[{Fh}:{Fh+3}], v[{Gl}:{Gl+3}], {acc}")
            out.append(f"v_mfma_f32_16x16x32_bf16 {acc}, v[{Fl}:{Fl+3}], v[{Gh}:{Gh+3}], {acc}")
        return out
    def treads(idx):
        b = 16 + 14 * (idx % 3)
        off = idx * TS
        return [f"ds_read_b64 v[{b+2*k}:{b+2*k+1}], v{144+k} offset:{off}" for k in range(7)]
    def checkpoint():
        n = checkpoint.n; checkpoint.n += 1
        a("s_cmp_lg_u32 s15, 0")
        a(f"s_cbranch_scc1 K12_CP{n}_END")
        a("s_cmp_lg_u32 s6, 0")
        a(f"s_cbranch_scc1 K12_CP{n}_LDS")
        a("s_waitcnt vmcnt(0)")
        a("v_cmp_ne_u32 vcc, s68, v206")
        a(f"s_cbranch_vccz K12_CP{n}_GO")
        a("global_load_dword v206, v151, s[64:65] sc1")
        a(f"s_branch K12_CP{n}_END")
        a.label(f"K12_CP{n}_GO")
        a("v_mov_b32 v7, 1")
        a("ds_write_b32 v158, v7")
        a(f"s_branch K12_CP{n}_LD")
        a.label(f"K12_CP{n}_LDS")
        a("ds_read_b32 v7, v158")
        a("s_waitcnt lgkmcnt(0)")
        a("v_readfirstlane_b32 s13, v7")
        a("s_cmp_eq_u32 s13, 0")
        a(f"s_cbranch_scc1 K12_CP{n}_END")
        a.label(f"K12_CP{n}_LD")
        a("global_load_dwordx4 v[196:199], v156, s[16:17] sc1")
        for k in range(4):
            a(f"global_load_dwordx4 v[{208+4*k}:{211+4*k}], v157, s[64:65] offset:{16*k} sc1")
        a("s_mov_b32 s15, 1")
        a.label(f"K12_CP{n}_END")
        a("s_waitcnt lgkmcnt(0)")
    checkpoint.n = 0
    pend = []
    for bt in range(2):
        build(bt)
        for m in pend: a(m)
        pend = []
        a("s_waitcnt lgkmcnt(0)")
        if bt == 0:
            a("s_barrier")
            a("v_bfe_u32 v8, v2, 2, 2")
            a("v_lshl_add_u32 v8, v4, 3, v8")
            a("s_lshr_b32 s7, s6, 2")
            a("s_lshl_b32 s10, s7, 5")
            a("v_add_u32 v8, s10, v8")
            a("s_movk_i32 s10, 144")
            a("v_mul_lo_u32 v8, v8, s10")
            a("v_and_b32 v9, 3, v2")
            a("v_lshl_add_u32 v8, v9, 3, v8")
            a("s_lshl_b32 s10, s9, 5")
            a(f"s_add_u32 s10, s10, {XTL}")
            a("v_add_u32 v8, s10, v8")
            a("ds_read_b64_tr_b16 v[208:209], v8")
            a(f"ds_read_b64_tr_b16 v[210:211], v8 offset:{4*144}")
            a("s_lshl_b32 s10, s67, 6")
            a("s_lshl_b32 s13, s9, 4")
            a("s_add_u32 s10, s10, s13")
            a("v_add_u32 v9, s10, v3")
            a("v_lshlrev_b32 v9, 12, v9")
            a("v_lshl_add_u32 v9, v4, 4, v9")
            a("s_lshl_b32 s10, s66, 7")
            a("s_lshl_b32 s13, s7, 6")
            a("s_add_u32 s10, s10, s13")
            a(f"s_add_u32 s10, s10, {hex(WS_XT)}")
            a("v_add_u32 v9, s10, v9")
            a("s_waitcnt lgkmcnt(0)")
            a("global_store_dwordx4 v9, v[208:211], s[64:65] sc1")
            a("v_mov_b32 v207, 0")
            a("global_load_dword v207, v207, s[62:63] sc1")
        for x in treads(0): a(x)
        for x in treads(1): a(x)
        for ss in range(2):
            body = []
            st = ss
            for e in range(4):
                idx = 4 * ss + e
                if idx < 6:
                    body += treads(idx + 2)
                    body.append("s_waitcnt lgkmcnt(14)")
                elif idx == 6:
                    body.append("s_waitcnt lgkmcnt(7)")
                else:
                    body.append("s_waitcnt lgkmcnt(0)")
                if bt == 1 and e == 2: body.append("@CP")
                b = 16 + 14 * (idx % 3)
                P, Q, C0, O0, C1, O1, C2 = [b + 2 * k for k in range(7)]
                body += [f"v_mul_f32 v58, v{P}, v{Q}", f"v_mul_f32 v59, v{P}, v{Q+1}",
                         f"v_mul_f32 v60, v{C0}, v{O0}", f"v_mul_f32 v61, v{C0}, v{O0+1}",
                         f"v_mul_f32 v62, v{C1}, v{O1}", f"v_mul_f32 v63, v{C1}, v{O1+1}",
                         f"v_fma_f32 v58, -v{P+1}, v{Q+1}, v58", f"v_fma_f32 v59, -v{P+1}, v{Q}, -v59",
                         f"v_fma_f32 v60, -v{C0+1}, v{O0+1}, v60", f"v_fma_f32 v61, v{C0+1}, v{O0}, v61",
                         f"v_fma_f32 v62, -v{C1+1}, v{O1+1}, v62", f"v_fma_f32 v63, v{C1+1}, v{O1}, v63"]
                vals = [(58, 59), (60, 61), (62, 63), (C2, C2 + 1)]
                order = [3, 0, 1, 2]
                for X in order:
                    r, i = vals[X]
                    body.append(f"v_perm_b32 v{frag(st,X,0)+e}, v{i}, v{r}, s25")
                    body.append(f"v_and_b32 v{66+2*X}, v159, v{r}")
                    body.append(f"v_and_b32 v{67+2*X}, v159, v{i}")
                for X in order:
                    r, i = vals[X]
                    body.append(f"v_sub_f32 v{66+2*X}, v{r}, v{66+2*X}")
                    body.append(f"v_sub_f32 v{67+2*X}, v{i}, v{67+2*X}")
                for X in order:
                    body.append(f"v_perm_b32 v{frag(st,X,1)+e}, v{67+2*X}, v{66+2*X}, s25")
            if pend:
                body = interleave(body, pend, start=8)
            for x in body:
                if x == "@CP": checkpoint()
                else: a(x)
            pend = mfmas(st)
            if bt == 0 and ss == 0:
                a("s_waitcnt vmcnt(0)")
                gettag("K12_T1")
                a("v_mov_b32 v7, 1")
                a(f"v_mov_b32 v15, {CNT}")
                a("s_mov_b64 exec, 1")
                a("ds_add_rtn_u32 v7, v15, v7")
                a("s_waitcnt lgkmcnt(0)")
                a("v_readfirstlane_b32 s7, v7")
                a("s_cmp_lg_u32 s7, 7")
                a("s_cbranch_scc1 K12_NOSIG1")
                a("v_mov_b32 v7, s68")
                a("s_lshl_b32 s7, s3, 7")
                a(f"s_add_u32 s7, s7, {hex(WS_FL)}")
                a("v_mov_b32 v15, s7")
                a("global_store_dword v15, v7, s[64:65] sc1")
                a.label("K12_NOSIG1")
                a("s_mov_b64 exec, -1")

            if bt == 0 and ss == 0:
                a("s_lshl_b32 s5, s4, 12")
                a(f"s_mul_i32 s10, s8, {CH}")
                a("v_and_b32 v155, 0xff, v0")
                a("v_lshlrev_b32 v156, 4, v155")
                a("v_lshlrev_b32 v157, 2, v156")
                a("s_add_u32 s16, s64, s5")
                a("s_addc_u32 s17, s65, 0")
                add64(a, 30, 16, WS_HT)
                a(f"s_add_u32 s16, s16, {hex(WS_XT)}")
                a("s_addc_u32 s17, s17, 0")
                a(f"v_mov_b32 v158, {CNT+4}")
                a("s_mov_b32 s15, 0")
                a("s_lshr_b32 s14, s4, 6")
                a("s_lshl_b32 s14, s14, 5")
                a("v_and_b32 v151, 31, v2")
                a("v_add_u32 v8, s14, v151")
                a("v_add_u32 v151, 224, v151")
                a("v_cmp_gt_u32 vcc, 32, v2")
                a("v_cndmask_b32 v151, v151, v8, vcc")
                a("v_lshlrev_b32 v151, 7, v151")
                a(f"v_add_u32 v151, {hex(WS_FL)}, v151")
                a("v_mov_b32 v206, 0")
            if (bt, ss) in ((0, 1), (1, 0)):
                checkpoint()
    for m in pend: a(m)
    a("s_mov_b32 s14, 0")
    a.label("K12_SPIN")
    checkpoint()
    a("s_cmp_lg_u32 s15, 0")
    a("s_cbranch_scc1 K12_LDDONE")
    a("s_sleep 2")
    a("s_add_u32 s14, s14, 1")
    a("s_cmp_lt_u32 s14, 50000")
    a("s_cbranch_scc1 K12_SPIN")
    a.label("K12_LDDONE")
    stamp()
    a("s_mul_i32 s7, s6, 3072")
    a(f"s_add_u32 s7, s7, {PART}")
    a("v_lshlrev_b32 v9, 2, v2")
    a("v_add_u32 v10, s7, v9")
    for r in range(12):
        a(f"ds_write_b32 v10, v{160+r} offset:{r*256}")
    a("v_mov_b32 v3, v155")
    a("v_mov_b32 v4, v156")
    a(f"s_mul_i32 s7, s8, {LS}")
    a(f"s_add_u32 s7, s7, {LIN}")
    a("v_add_u32 v5, s7, v4")
    a("v_mov_b32 v24, 0"); a("v_mov_b32 v25, 0"); a("v_mov_b32 v26, 0"); a("v_mov_b32 v27, 0")
    a("v_cmp_gt_u32 vcc, 2, v3")
    a("s_and_saveexec_b64 s[28:29], vcc")
    a("ds_write_b128 v5, v[24:27]")
    a("ds_write_b128 v5, v[24:27] offset:4128")
    a("s_mov_b64 exec, s[28:29]")
    def ucalc(xr, sr, out, n):
        for k in range(n):
            t = 44 + 3 * (k & 1)
            a(f"v_lshlrev_b32 v{t}, 16, v{xr+k}")
            a(f"v_and_b32 v{t+1}, s24, v{xr+k}")
            a(f"v_sub_f32 v{t}, v{t}, v{sr+4*k}")
            a(f"v_sub_f32 v{t+1}, v{t+1}, v{sr+2+4*k}")
            a(f"v_cvt_pk_bf16_f32 v{t+2}, v{t}, v{t+1}")
            a(f"v_lshlrev_b32 v{t}, 16, v{t+2}")
            a(f"v_and_b32 v{t+1}, s24, v{t+2}")
            a(f"v_mul_f32 v{t}, v{t}, v{sr+1+4*k}")
            a(f"v_mul_f32 v{t+1}, v{t+1}, v{sr+3+4*k}")
            a(f"v_cvt_pk_bf16_f32 v{out+k}, v{t}, v{t+1}")
    a("s_waitcnt vmcnt(0)")
    ucalc(196, 208, 192, 4)
    a("ds_write_b128 v5, v[192:195] offset:32")
    a("v_lshlrev_b32 v10, 3, v3")
    a("v_sub_u32 v10, 0x7ff, v10")
    for e in range(8):
        a(f"v_subrev_u32 v{44+e}, {e}, v10")
        a(f"v_cvt_f32_u32 v{52+e}, v{44+e}")
        a(f"v_cvt_pk_bf16_f32 v{52+e}, v{52+e}, v{52+e}")
        a(f"v_and_b32 v{52+e}, 0xffff, v{52+e}")
        a(f"v_subrev_u32 v{52+e}, 0x4280, v{52+e}")
        a(f"v_med3_i32 v{52+e}, v{52+e}, v{44+e}, s12")
        a(f"v_lshlrev_b32 v{52+e}, 2, v{52+e}")
        a(f"v_add_u32 v{52+e}, s11, v{52+e}")
    a("s_waitcnt lgkmcnt(0)")
    a("s_barrier")
    stamp()
    a("s_mul_i32 s7, s8, 12288")
    a("s_lshl_b32 s13, s9, 8")
    a("s_add_u32 s7, s7, s13")
    a(f"s_add_u32 s7, s7, {PART}")
    a("v_add_u32 v9, s7, v9")
    for b in range(3):
        for w in range(4):
            a(f"ds_read_b32 v{80+4*b+w}, v9 offset:{w*3072 + b*1024}")
    a("v_add_u32 v6, s10, v4")
    a("v_mov_b32 v24, 0"); a("v_mov_b32 v25, 0"); a("v_mov_b32 v26, 0"); a("v_mov_b32 v27, 0")
    a("v_cmp_gt_u32 vcc, 32, v3")
    a("s_and_saveexec_b64 s[28:29], vcc")
    a("ds_write_b128 v6, v[24:27] offset:4096")
    a("ds_write_b128 v6, v[24:27] offset:8704")
    a("s_mov_b64 exec, s[28:29]")
    a("ds_read_b128 v[16:19], v5")
    a("ds_read_b128 v[20:23], v5 offset:16")
    a("ds_read_b128 v[208:211], v5 offset:4096")
    a("ds_read_b128 v[212:215], v5 offset:4112")
    a("s_waitcnt lgkmcnt(0)")
    for b in range(3):
        a(f"v_add_f32 v{80+4*b}, v{80+4*b}, v{81+4*b}")
        a(f"v_add_f32 v{82+4*b}, v{82+4*b}, v{83+4*b}")
        a(f"v_add_f32 v{80+4*b}, v{80+4*b}, v{82+4*b}")
        a(f"ds_write_b32 v{152+b}, v{80+4*b}")
    def copies(c0, off):
        for k in range(4): a(f"v_mov_b32 v{24+k}, v{c0+k+1}")
        for k in range(4): a(f"v_alignbyte_b32 v{30+k}, v{c0+k+1}, v{c0+k}, 2")
        for k in range(4): a(f"v_alignbyte_b32 v{38+k}, v{c0+k+2}, v{c0+k+1}, 2")
        src = {0: c0, 2: 24, 1: 30, 3: 38}
        for s in range(4):
            a(f"ds_write_b128 v6, v[{src[s]}:{src[s]+3}] offset:{UB + s*CS + OS4[s] + off}")
    copies(16, 0)
    a("s_cmp_lg_u32 s9, 0")
    a("s_cbranch_scc1 K12_NOC2")
    a("v_cmp_gt_u32 vcc, 2, v3")
    a("s_and_saveexec_b64 s[28:29], vcc")
    copies(208, 4096)
    a("s_mov_b64 exec, s[28:29]")
    a.label("K12_NOC2")
    a("s_waitcnt lgkmcnt(0)")
    a("s_barrier")
    stamp()
    for e in range(8):
        a(f"ds_read_b32 v{60+e}, v{52+e}")
    a("v_and_b32 v7, 15, v2")
    a("v_lshrrev_b32 v8, 4, v2")
    a("v_lshlrev_b32 v9, 5, v7")
    a("v_lshlrev_b32 v10, 4, v8")
    a("v_sub_u32 v9, v10, v9")
    a("s_lshl_b32 s7, s9, 6")
    a("s_sub_u32 s14, s10, s7")
    a("s_add_u32 s13, s14, 928")
    a("v_add_u32 v9, s13, v9")
    a("v_add_u32 v11, 1, v7")
    a("v_and_b32 v12, 3, v11")
    a("v_lshrrev_b32 v13, 2, v11")
    a("v_lshl_add_u32 v13, v8, 1, v13")
    a("v_lshlrev_b32 v13, 3, v13")
    a("v_lshlrev_b32 v14, 3, v12")
    a("s_mov_b32 s13, 0xa0704000")
    a("v_lshrrev_b32 v14, v14, s13")
    a("v_and_b32 v14, 0xff, v14")
    a("v_add_u32 v13, v13, v14")
    a(f"s_movk_i32 s13, {CS}")
    a("v_mul_lo_u32 v12, v12, s13")
    a("v_add_u32 v13, v13, v12")
    a(f"s_add_u32 s13, s14, {UB + 448}")
    a("v_add_u32 v10, s13, v13")
    a("s_waitcnt lgkmcnt(0)")
    for k in range(4):
        a(f"v_cvt_pk_bf16_f32 v{68+k}, v{60+2*k}, v{61+2*k}")
        a(f"v_lshlrev_b32 v76, 16, v{68+k}")
        a(f"v_and_b32 v77, s24, v{68+k}")
        a(f"v_sub_f32 v76, v{60+2*k}, v76")
        a(f"v_sub_f32 v77, v{61+2*k}, v77")
        a(f"v_cvt_pk_bf16_f32 v{72+k}, v76, v77")
    a("ds_write_b128 v6, v[68:71]")
    a("ds_write_b128 v6, v[72:75] offset:4608")
    for r in range(32): a(f"v_mov_b32 v{160+r}, 0")
    a("s_waitcnt lgkmcnt(0)")
    a("s_barrier")
    stamp()
    for gi in range(2):
        if gi == 1:
            a("v_subrev_u32 v9, 0x100, v9")
            a("v_subrev_u32 v10, 0x100, v10")
        for k in range(8):
            a(f"ds_read_b64 v[{128+4*k}:{129+4*k}], v10 offset:{512*k}")
            a(f"ds_read_b64 v[{130+4*k}:{131+4*k}], v10 offset:{512*k+8}")
            a(f"ds_read_b128 v[{64+8*k}:{67+8*k}], v9 offset:{512*(7-k)}")
            a(f"ds_read_b128 v[{68+8*k}:{71+8*k}], v9 offset:{512*(7-k)+4608}")
        for k in range(8):
            a(f"s_waitcnt lgkmcnt({min(15, 32-4*(k+1))})")
            pairs = [(k, dl) for dl in range(k + 1)] + [(t, k) for t in range(k)]
            for (t, dl) in pairs:
                if t + dl > 7: continue
                seg = t + dl
                acc = f"v[{160+4*seg}:{163+4*seg}]"
                a(f"v_mfma_f32_16x16x32_bf16 {acc}, v[{64+8*t}:{67+8*t}], v[{128+4*dl}:{131+4*dl}], {acc}")
                a(f"v_mfma_f32_16x16x32_bf16 {acc}, v[{68+8*t}:{71+8*t}], v[{128+4*dl}:{131+4*dl}], {acc}")
    stamp()
    a("s_lshl_b32 s7, s6, 13")
    a(f"s_add_u32 s7, s7, {RED}")
    a("v_lshlrev_b32 v9, 2, v2")
    a("v_add_u32 v9, s7, v9")
    for r in range(32):
        a(f"ds_write_b32 v9, v{160+r} offset:{256*r}")
    a("v_lshrrev_b32 v9, 5, v3")
    a("v_bfe_u32 v10, v3, 1, 4")
    a("v_and_b32 v11, 3, v10")
    a("v_lshl_add_u32 v9, v9, 2, v11")
    a("v_lshlrev_b32 v9, 8, v9")
    a("v_lshrrev_b32 v10, 2, v10")
    a("v_lshl_add_u32 v9, v10, 6, v9")
    a("v_and_b32 v11, 1, v3")
    a("v_lshl_add_u32 v9, v11, 5, v9")
    a("s_lshl_b32 s7, s8, 15")
    a(f"s_add_u32 s7, s7, {RED}")
    a("v_add_u32 v9, s7, v9")
    a("v_lshlrev_b32 v200, 16, v200")
    for k in range(4):
        a(f"v_lshlrev_b32 v25, 16, v{192+k}")
        a(f"v_and_b32 v26, s24, v{192+k}")
        a(f"v_mul_f32 v25, v25, v200")
        a(f"v_mul_f32 v26, v26, v200")
        a(f"v_cvt_pk_bf16_f32 v27, v25, v26")
        a(f"v_lshlrev_b32 v{208+2*k}, 16, v27")
        a(f"v_and_b32 v{209+2*k}, s24, v27")
        a(f"v_lshlrev_b32 v{216+2*k}, 16, v{196+k}")
        a(f"v_and_b32 v{217+2*k}, s24, v{196+k}")
    a("s_waitcnt lgkmcnt(0)")
    a("s_barrier")
    for w in range(4):
        a(f"ds_read_b128 v[{64+8*w}:{67+8*w}], v9 offset:{8192*w}")
        a(f"ds_read_b128 v[{68+8*w}:{71+8*w}], v9 offset:{8192*w+16}")
    a("s_waitcnt lgkmcnt(0)")
    for e in range(8):
        a(f"v_add_f32 v{64+e}, v{64+e}, v{72+e}")
        a(f"v_add_f32 v{80+e}, v{80+e}, v{88+e}")
        a(f"v_add_f32 v{64+e}, v{64+e}, v{80+e}")
    for k in range(4):
        a(f"v_cvt_pk_bf16_f32 v24, v{64+2*k}, v{65+2*k}")
        a(f"v_lshlrev_b32 v25, 16, v24")
        a(f"v_and_b32 v26, s24, v24")
        a(f"v_add_f32 v25, v25, v{208+2*k}")
        a(f"v_add_f32 v26, v26, v{209+2*k}")
        a(f"v_cvt_pk_bf16_f32 v24, v25, v26")
        a(f"v_lshlrev_b32 v25, 16, v24")
        a(f"v_and_b32 v26, s24, v24")
        a(f"v_add_f32 v25, v25, v{216+2*k}")
        a(f"v_add_f32 v26, v26, v{217+2*k}")
        a(f"v_cvt_pk_bf16_f32 v{32+k}, v25, v26")
    a("global_store_dwordx4 v4, v[32:35], s[30:31] sc1")
    a("s_endpgm")
    a.label("K12_TR")
    a.lines.append("; STAMP0")
    ST = 928
    a("v_mov_b32 v7, 0")
    a(f"v_mov_b32 v15, {CNT}")
    a("ds_write_b32 v15, v7")
    a("ds_write_b32 v15, v7 offset:4")
    a("s_mov_b32 s3, s2")
    a("s_lshl_b32 s3, s3, 6")
    a("v_lshrrev_b32 v3, 3, v0")
    a("v_and_b32 v4, 7, v0")
    a("v_add_u32 v5, s3, v3")
    a("s_movk_i32 s7, 896")
    a("v_mul_lo_u32 v6, v5, s7")
    a("v_lshl_add_u32 v6, v4, 4, v6")
    a("s_waitcnt lgkmcnt(0)")
    a("s_or_b32 s7, s2, s6")
    a("s_cmp_lg_u32 s7, 0")
    a("s_cbranch_scc1 K12_NOTAG")
    a("s_memrealtime s[68:69]")
    a("s_waitcnt lgkmcnt(0)")
    a("s_or_b32 s68, s68, 1")
    a("v_mov_b32 v7, s68")
    a("v_mov_b32 v15, 0")
    a("global_store_dword v15, v7, s[62:63] sc1")
    a("v_mov_b32 v15, 0x20000")
    a("global_store_dword v15, v7, s[64:65] sc1")
    a.label("K12_NOTAG")
    a("s_barrier")
    for i in range(7):
        a(f"global_load_dwordx4 v[{16+4*i}:{19+4*i}], v6, s[36:37] offset:{128*i}")
    a("s_waitcnt vmcnt(0)")
    stamp()
    a("v_mov_b32 v207, 0")
    a("global_load_dword v207, v207, s[62:63] sc1")
    a.label("K12_TRX")
    a("v_mov_b32 v44, s24")
    for i in range(7):
        for k in range(4):
            a(f"v_lshlrev_b32 v{48+8*i+2*k}, 16, v{16+4*i+k}")
            a(f"v_and_b32 v{49+8*i+2*k}, v44, v{16+4*i+k}")
    a("v_add_f32 v8, v48, v49")
    a("v_add_f32 v9, v50, v51")
    for k in range(2, 28):
        a(f"v_add_f32 v{8+(k&1)}, v{8+(k&1)}, v{48+2*k}")
        a(f"v_add_f32 v{8+(k&1)}, v{8+(k&1)}, v{49+2*k}")
    a("v_add_f32 v8, v8, v9")
    def red8(r):
        a(f"v_add_f32_dpp {r}, {r}, {r} quad_perm:[1,0,3,2] row_mask:0xf bank_mask:0xf")
        a(f"v_add_f32_dpp {r}, {r}, {r} quad_perm:[2,3,0,1] row_mask:0xf bank_mask:0xf")
        a(f"v_add_f32_dpp {r}, {r}, {r} row_half_mirror row_mask:0xf bank_mask:0xf")
    red8('v8')
    a(f"s_mov_b32 s8, {f32bits(1.0/448)}")
    a("v_mul_f32 v8, s8, v8")
    a("v_mov_b32 v10, 0")
    a("v_mov_b32 v11, 0")
    for k in range(56):
        a(f"v_sub_f32 v{12+(k&1)}, v{48+k}, v8")
        a(f"v_fma_f32 v{10+(k&1)}, v{12+(k&1)}, v{12+(k&1)}, v{10+(k&1)}")
    a("v_add_f32 v10, v10, v11")
    red8('v10')
    a("v_mul_f32 v10, s8, v10")
    a("v_cvt_pk_bf16_f32 v11, v8, v10")
    a("v_lshlrev_b32 v8, 16, v11")
    a("v_and_b32 v10, s24, v11")
    a(f"v_add_f32 v10, {f32bits(1e-5)}, v10")
    a("v_cvt_pk_bf16_f32 v10, v10, v10")
    a("v_lshlrev_b32 v10, 16, v10")
    a("v_sqrt_f32 v10, v10")
    a("v_cvt_pk_bf16_f32 v10, v10, v10")
    a("v_lshlrev_b32 v10, 16, v10")
    a("v_rcp_f32 v9, v10")
    a("v_lshlrev_b32 v5, 3, v5")
    a("v_cmp_eq_u32 vcc, 0, v4")
    a("s_and_saveexec_b64 s[28:29], vcc")
    a("global_store_dwordx2 v5, v[8:9], s[64:65] sc1")
    a("s_mov_b64 exec, s[28:29]")
    a("s_waitcnt vmcnt(0)")
    stamp()
    gettag("K12_T2")
    a("v_mov_b32 v7, 1")
    a(f"v_mov_b32 v15, {CNT}")
    a("s_mov_b64 exec, 1")
    a("ds_add_rtn_u32 v7, v15, v7")
    a("s_waitcnt lgkmcnt(0)")
    a("v_readfirstlane_b32 s7, v7")
    a("s_cmp_lg_u32 s7, 7")
    a("s_cbranch_scc1 K12_NOSIG")
    a("v_mov_b32 v7, s68")
    a("s_add_u32 s7, s2, 224")
    a("s_lshl_b32 s7, s7, 7")
    a(f"s_add_u32 s7, s7, {hex(WS_FL)}")
    a("v_mov_b32 v15, s7")
    a("global_store_dword v15, v7, s[64:65] sc1")
    a.label("K12_NOSIG")
    a("s_mov_b64 exec, -1")
    a("s_barrier")
    a("s_lshl_b32 s3, s2, 3")
    a("s_add_u32 s3, s3, s6")
    a("s_mul_i32 s7, s6, 5120")
    a("v_lshrrev_b32 v3, 3, v2")
    a("v_and_b32 v4, 7, v2")
    a("s_movk_i32 s8, 3584")
    a("v_mul_lo_u32 v5, v3, s8")
    a("v_lshl_add_u32 v5, v4, 4, v5")
    a("s_movk_i32 s8, 896")
    a("v_mul_lo_u32 v11, v3, s8")
    a("v_lshl_add_u32 v11, v4, 4, v11")
    a("s_movk_i32 s8, 160")
    a("v_mul_lo_u32 v6, v3, s8")
    a("v_lshl_add_u32 v6, v4, 4, v6")
    a("v_add_u32 v6, s7, v6")
    a("v_lshrrev_b32 v7, 4, v2")
    a("v_bfe_u32 v8, v2, 2, 2")
    a("v_lshl_add_u32 v12, v7, 3, v8")
    a("v_lshl_add_u32 v7, v7, 2, v8")
    a("v_mul_lo_u32 v7, v7, s8")
    a("v_mul_lo_u32 v12, v12, s8")
    a("v_and_b32 v8, 3, v2")
    a("v_lshl_add_u32 v7, v8, 4, v7")
    a("v_add_u32 v7, s7, v7")
    a("v_lshl_add_u32 v12, v8, 3, v12")
    a("v_add_u32 v12, s7, v12")
    a("v_lshlrev_b32 v8, 4, v2")
    add64(a, 34, 64, WS_W1F)
    add64(a, 28, 64, WS_W2F)
    a("s_add_u32 s4, s3, 256")
    a("s_min_u32 s4, s4, 391")
    for j, su in enumerate(('s3', 's4')):
        a(f"s_mul_i32 s{40+4*j}, {su}, 9363")
        a(f"s_lshr_b32 s{40+4*j}, s{40+4*j}, 18")
        a(f"s_mul_i32 s{41+4*j}, s{40+4*j}, 28")
        a(f"s_sub_u32 s{41+4*j}, {su}, s{41+4*j}")
        a(f"s_mul_i32 s{42+4*j}, {su}, 9363")
        a(f"s_lshr_b32 s{42+4*j}, s{42+4*j}, 16")
        a(f"s_mul_i32 s{43+4*j}, s{42+4*j}, 7")
        a(f"s_sub_u32 s{43+4*j}, {su}, s{43+4*j}")
    for j in range(2):
        a(f"s_mul_i32 s11, s{40+4*j}, 114688")
        a(f"s_lshl_b32 s12, s{41+4*j}, 7")
        a("s_add_u32 s11, s11, s12")
        a("v_add_u32 v9, s11, v5")
        for i in range(4):
            if i: a(f"v_add_u32 v9, {8*3584}, v9")
            a(f"global_load_dwordx4 v[{64+16*j+4*i}:{67+16*j+4*i}], v9, s[56:57]")
    for j in range(2):
        a(f"s_mul_i32 s11, s{42+4*j}, 28672")
        a(f"s_lshl_b32 s12, s{43+4*j}, 7")
        a("s_add_u32 s11, s11, s12")
        a("v_add_u32 v9, s11, v11")
        for i in range(4):
            if i: a(f"v_add_u32 v9, {8*896}, v9")
            a(f"global_load_dwordx4 v[{96+16*j+4*i}:{99+16*j+4*i}], v9, s[58:59]")
    nst = 0
    for j in range(2):
        a(f"s_waitcnt vmcnt({12-4*j + nst})")
        for i in range(4):
            a(f"ds_write_b128 v6, v[{64+16*j+4*i}:{67+16*j+4*i}] offset:{8*160*i}")
        a("s_waitcnt lgkmcnt(0)")
        for fgl in range(2):
            for T in range(2):
                b = 128 + 16 * j + 8 * fgl + 4 * T
                a(f"ds_read_b64_tr_b16 v[{b}:{b+1}], v7 offset:{64*fgl+8*T}")
                a(f"ds_read_b64_tr_b16 v[{b+2}:{b+3}], v7 offset:{64*fgl+8*T+16*160}")
        a(f"s_mul_i32 s11, s{41+4*j}, 57344")
        a(f"s_lshl_b32 s12, s{40+4*j}, 11")
        a("s_add_u32 s11, s11, s12")
        a("v_add_u32 v9, s11, v8")
        a("v_add_u32 v10, 28672, v9")
        a("s_waitcnt lgkmcnt(0)")
        b = 128 + 16 * j
        a(f"global_store_dwordx4 v9, v[{b}:{b+3}], s[34:35] sc1")
        a(f"global_store_dwordx4 v9, v[{b+4}:{b+7}], s[34:35] offset:1024 sc1")
        a(f"global_store_dwordx4 v10, v[{b+8}:{b+11}], s[34:35] sc1")
        a(f"global_store_dwordx4 v10, v[{b+12}:{b+15}], s[34:35] offset:1024 sc1")
        nst += 4
    for j in range(2):
        a(f"s_waitcnt vmcnt({4-4*j + nst})")
        for i in range(4):
            a(f"ds_write_b128 v6, v[{96+16*j+4*i}:{99+16*j+4*i}] offset:{8*160*i}")
        a("s_waitcnt lgkmcnt(0)")
        for T in range(4):
            b = 160 + 16 * j + 4 * T
            a(f"ds_read_b64_tr_b16 v[{b}:{b+1}], v12 offset:{32*T}")
            a(f"ds_read_b64_tr_b16 v[{b+2}:{b+3}], v12 offset:{32*T+4*160}")
        a(f"s_mul_i32 s11, s{43+4*j}, 229376")
        a(f"s_lshl_b32 s12, s{42+4*j}, 12")
        a("s_add_u32 s11, s11, s12")
        a("v_add_u32 v9, s11, v8")
        a("s_waitcnt lgkmcnt(0)")
        for T in range(4):
            a(f"global_store_dwordx4 v9, v[{160+16*j+4*T}:{163+16*j+4*T}], s[28:29] offset:{1024*T} sc1")
        nst += 4
    a.label("K12_END")
    a("s_endpgm")
    return a.finalize(), 232, XTL + 9216

if __name__ == '__main__':
    ks = [('k12_kernel', gen_k12, 256, 512), ('k3_kernel', gen_k3, 256, 512), ('k4_kernel', gen_k4, 224, 512)]
    open('cdna_kernels/' + NAME + '.s', 'w').write(build(ks))
```
